```python
import torch

def _softmax(x, axis=-1):
    return torch.softmax(x, dim=axis)
def _gelu(x):
    return torch.nn.functional.gelu(x, approximate="tanh")
def _silu(x):
    return torch.nn.functional.silu(x)
def _sigmoid(x):
    return torch.sigmoid(x)
def _layernorm(x, axis=-1, eps=1e-5):
    m = x.mean(dim=axis, keepdim=True)
    v = x.var(dim=axis, keepdim=True, unbiased=False)
    return (x - m) / torch.sqrt(v + eps)
def _scatter_add(tgt, idx, src, axis=0):
    return tgt.clone().index_add_(axis, idx, src)
def _segment_sum(src, seg, n):
    out = torch.zeros((n,) + src.shape[1:], dtype=src.dtype)
    return out.index_add_(0, seg, src)
def _pad(x, pw):
    flat = tuple(v for pair in reversed(pw) for v in pair)
    return torch.nn.functional.pad(x, flat)

kernel_name = 'interleave_layers__spectral_gfnet__softmax_full_mha__prompt'

def setup_inputs():

    _w = (lambda a: (lambda t: t.to(torch.bfloat16) if t.is_floating_point() else t)(torch.as_tensor(a)))
    def _A_setup():
        B, S, D = 1, 2048, 576
        Df = D // 2 + 1
        return {
            "x": _w((lambda *s: torch.randn(*s, dtype=torch.bfloat16) * 0.05)(B, S, D)),
            "w_r": _w((lambda *s: torch.randn(*s, dtype=torch.bfloat16) * 1.6)(S, Df) * 0.02),
            "w_i": _w((lambda *s: torch.randn(*s, dtype=torch.bfloat16) * 1.6)(S, Df) * 0.02),
        }
    _A_in = _A_setup()

    def _B_setup():
        B, S, D = 1, 2048, 576
        return {
            "x": _w((lambda *s: torch.randn(*s, dtype=torch.bfloat16) * 0.05)(B, S, D)),
            "wqkv": _w((lambda *s: torch.randn(*s, dtype=torch.bfloat16) * 0.05)(D, 3 * D)),
            "wo": _w((lambda *s: torch.randn(*s, dtype=torch.bfloat16) * 0.05)(D, D)),
        }
    _B_in = _B_setup()

    return {
        "A_x": _A_in["x"],
        "A_w_r": _A_in["w_r"],
        "A_w_i": _A_in["w_i"],
        "B_x": _B_in["x"],
        "B_wqkv": _B_in["wqkv"],
        "B_wo": _B_in["wo"],
    }

def reference(A_x, A_w_r, A_w_i, B_x, B_wqkv, B_wo):
    def _A_ref(x, w_r, w_i):
        B, S, D = x.shape
        X = (lambda x, axes=(-2,-1): torch.fft.rfft2(x.float(), dim=axes))(x, axes=(-2, -1))
        W = w_r + 1j * w_i
        X = X * W
        y = (lambda x, s, axes=(-2,-1): torch.fft.irfft2(x, s=s, dim=axes).to(torch.bfloat16))(X, (S, D), axes=(-2, -1))
        return y

    def _B_ref(x, wqkv, wo):
        B, S, D = x.shape
        H = 32; Dh = D // H
        qkv = (lambda x, *d: x.permute(*d))((x @ wqkv).reshape(B, S, 3, H, Dh), 2, 0, 3, 1, 4)
        q, k, v = qkv[0], qkv[1], qkv[2]
        scale = Dh ** -0.5
        scores = torch.einsum("bhqd,bhkd->bhqk", q, k) * scale
        p = _softmax(scores, axis=-1)
        o = torch.einsum("bhqk,bhkd->bhqd", p, v)
        return (lambda x, *d: x.permute(*d))(o, 0, 2, 1, 3).reshape(B, S, D) @ wo

    x = A_x
    x = x + _A_ref(_layernorm(x, axis=-1), A_w_r, A_w_i)
    x = x + _B_ref(_layernorm(x, axis=-1), B_wqkv, B_wo)
    x = x + _A_ref(_layernorm(x, axis=-1), A_w_r, A_w_i)
    x = x + _B_ref(_layernorm(x, axis=-1), B_wqkv, B_wo)
    return x
```

```python
import re

TRANS = ('v_exp_f32', 'v_log_f32', 'v_rcp_f32', 'v_rsq_f32', 'v_sqrt_f32', 'v_sin_f32', 'v_cos_f32',
         'v_rcp_iflag_f32', 'v_exp_f16', 'v_rcp_f16')
REG_RE = re.compile(r'^[-|]*([vas])(?:(\d+)|\[(\d+):(\d+)\])\|?$')


def v(n, c=1):
    return f'v{n}' if c == 1 else f'v[{n}:{n + c - 1}]'


def a(n, c=1):
    return f'a{n}' if c == 1 else f'a[{n}:{n + c - 1}]'


def s(n, c=1):
    return f's{n}' if c == 1 else f's[{n}:{n + c - 1}]'


def R(n, c=1):
    if n >= 256:
        return a(n - 256, c)
    assert n + c <= 256
    return v(n, c)


def regs_of(tok):
    tok = tok.strip()
    m = REG_RE.match(tok)
    if m:
        k = m.group(1)
        if m.group(2) is not None:
            return [(k, int(m.group(2)))]
        return [(k, i) for i in range(int(m.group(3)), int(m.group(4)) + 1)]
    if tok in ('vcc', 'vcc_lo', 'vcc_hi'):
        return [('s', 106), ('s', 107)]
    if tok in ('exec', 'exec_lo', 'exec_hi'):
        return [('x', 0)]
    if tok == 'm0':
        return [('m', 0)]
    return []


class I:
    __slots__ = ('text', 'op', 'cls', 'rd', 'wr', 'ops', 'mods', 'target', 'passes', 'D', 'C', 'AB', 'dpp',
                 'kind', 'wide', 'lds', 'nobarwait')

    def __init__(self, text):
        self.text = text
        t = text.split(';')[0].strip()
        sp = t.split(None, 1)
        op = sp[0]
        self.op = op
        rest = sp[1] if len(sp) > 1 else ''
        parts, depth, cur = [], 0, ''
        for ch in rest:
            if ch in '[(':
                depth += 1
            if ch in '])':
                depth -= 1
            if ch == ',' and depth == 0:
                parts.append(cur)
                cur = ''
            else:
                cur += ch
        if cur.strip():
            parts.append(cur)
        mods = ''
        if parts:
            last = parts[-1].strip().split(None, 1)
            parts[-1] = last[0]
            mods = last[1] if len(last) > 1 else ''
        ops = [p.strip() for p in parts]
        self.ops, self.mods = ops, mods
        self.target = None
        self.passes = 0
        self.D = self.C = self.AB = ()
        self.dpp = False
        self.kind = None
        self.wide = ()
        self.lds = False
        self.nobarwait = False
        rd, wr = [], []
        RR = regs_of
        base = re.sub(r'_(e32|e64|dpp|sdwa)$', '', op)
        if op.startswith('v_mfma'):
            self.cls = 'mfma'
            self.passes = 8 if ('32x32x16' in op or '32x32x8' in op) else 4 if '16x16x32' in op else None
            assert self.passes, op
            self.D = tuple(RR(ops[0]))
            self.AB = tuple(RR(ops[1]) + RR(ops[2]))
            self.C = tuple(RR(ops[3]))
            wr += self.D
            rd += list(self.AB) + list(self.C)
        elif op.startswith('v_'):
            self.cls = 'valu'
            self.kind = 'trans' if base in TRANS else 'dot' if base.startswith('v_dot') else 'valu'
            if 'op_sel' in mods or 'dst_sel' in mods:
                self.kind = 'opsel' if self.kind == 'valu' else self.kind
                rd += RR(ops[0])
            if any(k in mods for k in ('quad_perm', 'row_', 'wave_')):
                self.dpp = True
                rd += RR(ops[0])
            if base in ('v_swap_b32', 'v_permlane16_swap_b32', 'v_permlane32_swap_b32'):
                wr += RR(ops[0]) + RR(ops[1])
                rd += RR(ops[0]) + RR(ops[1])
            elif base.startswith('v_cmpx'):
                wr += [('x', 0)] + RR(ops[0])
                for o in ops[1:]:
                    rd += RR(o)
            elif base in ('v_add_co_u32', 'v_sub_co_u32', 'v_addc_co_u32', 'v_subb_co_u32', 'v_subrev_co_u32'):
                wr += RR(ops[0]) + RR(ops[1])
                for o in ops[2:]:
                    rd += RR(o)
            elif base == 'v_nop':
                pass
            else:
                wr += RR(ops[0])
                for o in ops[1:]:
                    rd += RR(o)
                if base in ('v_fmac_f32', 'v_mac_f32', 'v_pk_fmac_f16', 'v_writelane_b32') or base.startswith('v_dot2c'):
                    rd += RR(ops[0])
        elif op.startswith('ds_'):
            self.cls = 'ds'
            if op.startswith(('ds_read', 'ds_bpermute', 'ds_permute', 'ds_swizzle')) or '_rtn' in op:
                wr += RR(ops[0])
                for o in ops[1:]:
                    rd += RR(o)
            else:
                for o in ops:
                    rd += RR(o)
        elif op.startswith(('buffer_', 'global_')):
            self.cls = 'vmem'
            if op in ('buffer_wbl2', 'buffer_inv'):
                pass
            elif 'load' in op:
                if re.search(r'\blds\b', mods) or '_lds_' in op:
                    self.lds = True
                    for o in ops:
                        rd += RR(o)
                    rd += [('m', 0)]
                else:
                    wr += RR(ops[0])
                    for o in ops[1:]:
                        rd += RR(o)
            else:
                for o in ops:
                    rd += RR(o)
                if 'atomic' in op and re.search(r'\bsc0\b', mods):
                    wr += RR(ops[0])
                if 'store' in op and ('x3' in op or 'x4' in op):
                    self.wide = tuple(RR(ops[0] if op.startswith('buffer') else ops[1]))
        elif op.startswith(('s_load', 's_buffer_load', 's_memtime', 's_memrealtime', 's_atomic')):
            self.cls = 'smem'
            wr += RR(ops[0])
            for o in ops[1:]:
                rd += RR(o)
        elif op == 's_waitcnt':
            self.cls = 'wait'
        elif op == 's_nop':
            self.cls = 'nop'
        elif op == 's_barrier':
            self.cls = 'barrier'
        elif op == 's_endpgm':
            self.cls = 'end'
        elif op == 's_branch' or op.startswith('s_cbranch'):
            self.cls = 'branch'
            self.target = ops[0]
        elif op.startswith('s_'):
            self.cls = 'salu'
            if op.startswith(('s_cmp', 's_bitcmp', 's_setprio', 's_sleep', 's_setreg')):
                for o in ops:
                    rd += RR(o)
            else:
                wr += RR(ops[0])
                for o in ops[1:]:
                    rd += RR(o)
                if 'saveexec' in op:
                    wr += [('x', 0)]
                if op.startswith(('s_cmov', 's_cselect')) or op in ('s_addk_i32', 's_mulk_i32'):
                    rd += RR(ops[0])
        else:
            raise ValueError('unknown instruction ' + text)
        self.rd, self.wr = tuple(rd), tuple(wr)


BIG = 1000


class St:
    def __init__(self):
        self.h = {}
        self.vm = {}
        self.lg = {}
        self.sm = set()
        self.dsany = None

    def copy(self):
        n = St()
        n.h = dict(self.h)
        n.vm = dict(self.vm)
        n.lg = dict(self.lg)
        n.sm = set(self.sm)
        n.dsany = self.dsany
        return n

    def merge(self, o):
        ch = False
        for k, val in o.h.items():
            if k not in self.h or val < self.h[k]:
                self.h[k] = val
                ch = True
        for mine, other in ((self.vm, o.vm), (self.lg, o.lg)):
            for k, val in other.items():
                if k not in mine or val < mine[k]:
                    mine[k] = val
                    ch = True
        if not o.sm <= self.sm:
            self.sm |= o.sm
            ch = True
        if o.dsany is not None and (self.dsany is None or o.dsany < self.dsany):
            self.dsany = o.dsany
            ch = True
        return ch

    def advance(self, n):
        self.h = {k: d + n for k, d in self.h.items() if d + n < 24}

    def wait(self, vmc=None, lgc=None):
        if vmc is not None:
            self.vm = {k: x for k, x in self.vm.items() if x < vmc}
        if lgc is not None:
            self.lg = {k: x for k, x in self.lg.items() if x < lgc}
            if self.dsany is not None and self.dsany >= lgc:
                self.dsany = None
            if lgc == 0:
                self.sm = set()


def parse_wait(text):
    vm = re.search(r'vmcnt\((\d+)\)', text)
    lg = re.search(r'lgkmcnt\((\d+)\)', text)
    return (int(vm.group(1)) if vm else None, int(lg.group(1)) if lg else None)


MF_RAW = {4: 8, 8: 12}
MF_COV = {4: 6, 8: 10}
MF_WAR = {4: 3, 8: 7}


def step(ins, st, out):
    c = ins.cls
    if c == 'wait':
        vmc, lgc = parse_wait(ins.text)
        st.wait(vmc, lgc)
        out.append(ins.text)
        st.advance(1)
        return
    if c == 'nop':
        out.append(ins.text)
        st.advance(int(ins.ops[0]) + 1)
        return
    vmc = lgc = None
    touched = set(ins.rd) | set(ins.wr)
    for r in touched:
        if r in st.vm and not (c == 'vmem' and r in ins.wr and r not in ins.rd):
            x = st.vm[r]
            vmc = x if vmc is None else min(vmc, x)
        if r in st.lg and not (c == 'ds' and r in ins.wr and r not in ins.rd):
            x = st.lg[r]
            lgc = x if lgc is None else min(lgc, x)
        if r in st.sm:
            lgc = 0
    if c == 'barrier' and st.dsany is not None and not ins.nobarwait:
        lgc = 0
    if lgc is not None and st.sm:
        lgc = 0
    if vmc is not None and vmc > 62:
        vmc = None
    if lgc is not None and lgc > 14:
        lgc = 14
    if vmc is not None or lgc is not None:
        t = 's_waitcnt'
        if vmc is not None:
            t += f' vmcnt({vmc})'
        if lgc is not None:
            t += f' lgkmcnt({lgc})'
        out.append(t)
        st.wait(vmc, lgc)
        st.advance(1)
    need = 0
    H = st.h

    def req(tag, r, ws):
        nonlocal need
        d = H.get((tag, r))
        if d is not None and ws - d > need:
            need = ws - d

    if c == 'mfma':
        for r in ins.rd:
            req('vw', r, 2)
            req('dot', r, 3)
        for r in ins.AB:
            req('m4', r, 8)
            req('m8', r, 12)
        key = (ins.passes, ins.C[0], len(ins.C)) if ins.C else None
        for r in ins.C:
            for p in (4, 8):
                if (('mx', r, key) in H and p == ins.passes and H[('mx', r, key)] == H.get((f'm{p}', r))):
                    continue
                req(f'm{p}', r, MF_COV[p])
        req('xw', ('x', 0), 4)
    elif c == 'valu':
        for r in touched:
            req('m4', r, 8)
            req('m8', r, 12)
            if ins.kind != 'dot':
                req('dot', r, 3)
        if ins.kind == 'dot':
            for r in ins.rd[:8]:
                pass
            srcs = []
            for o in ins.ops[1:3]:
                srcs += regs_of(o)
            for r in srcs:
                req('dot', r, 3)
        for r in ins.wr:
            req('c4', r, 3)
            req('c8', r, 7)
            req('st', r, 2)
        for r in ins.rd:
            if ins.kind != 'trans':
                req('tr', r, 1)
            req('os', r, 1)
            if r[0] == 's':
                req('sw', r, 4 if ins.op.startswith(('v_readlane', 'v_writelane', 'v_div_fmas')) else 2)
            if ins.dpp or ins.op.startswith('v_permlane'):
                req('vw', r, 2)
            if ins.op.startswith(('v_readlane', 'v_readfirstlane')):
                req('vw', r, 1)
        for r in ins.wr:
            req('os', r, 1)
        if ins.dpp:
            req('xw', ('x', 0), 5)
        if ins.op.startswith(('v_readlane', 'v_readfirstlane', 'v_writelane', 'v_permlane')):
            req('xw', ('x', 0), 4)
    elif c in ('ds', 'vmem'):
        for r in touched:
            req('m4', r, 8)
            req('m8', r, 12)
            req('dot', r, 3)
            if r[0] == 's':
                req('sw', r, 5)
        for r in ins.wr:
            req('st', r, 1)
        if ins.lds:
            req('m0', ('m', 0), 1)
    elif c == 'branch':
        if 'vcc' in ins.op:
            req('sw', ('s', 106), 5)
        if 'exec' in ins.op:
            req('xw', ('x', 0), 5)
    while need > 0:
        n = min(need, 16)
        out.append(f's_nop {n - 1}')
        st.advance(n)
        need -= n
    out.append(ins.text)
    st.advance(1)
    H = st.h
    if c == 'mfma':
        key = (ins.passes, ins.D[0], len(ins.D))
        for r in ins.D:
            H[(f'm{ins.passes}', r)] = 0
            H[('mx', r, key)] = 0
        for r in ins.C:
            H[(f'c{ins.passes}', r)] = 0
    elif c == 'valu':
        for r in ins.wr:
            if r[0] in 'va':
                H[('vw', r)] = 0
                if ins.kind == 'trans':
                    H[('tr', r)] = 0
                elif ins.kind == 'dot':
                    H[('dot', r)] = 0
                elif ins.kind == 'opsel':
                    H[('os', r)] = 0
            elif r[0] == 's':
                H[('sw', r)] = 0
            elif r[0] == 'x':
                H[('xw', r)] = 0
    elif c == 'salu':
        if ('m', 0) in ins.wr:
            H[('m0', ('m', 0))] = 0
    elif c == 'vmem':
        for k in st.vm:
            st.vm[k] += 1
        for r in ins.wr:
            st.vm[r] = 0
        for r in ins.wide:
            H[('st', r)] = 0
    elif c == 'ds':
        for k in st.lg:
            st.lg[k] += 1
        for r in ins.wr:
            st.lg[r] = 0
        st.dsany = 0
    elif c == 'smem':
        for r in ins.wr:
            st.sm.add(r)


class Kern:
    def __init__(self, name):
        self.name = name
        self.items = []
        self.nlab = 0
        self.maxv = 0
        self.maxa = 0
        self.maxs = 0

    def __call__(self, text):
        for line in text.strip().split('\n'):
            line = line.strip()
            if not line or line.startswith(';'):
                continue
            ins = I(line)
            for k, n in ins.rd + ins.wr:
                if k == 'v':
                    self.maxv = max(self.maxv, n + 1)
                elif k == 'a':
                    self.maxa = max(self.maxa, n + 1)
                elif k == 's' and n < 106:
                    self.maxs = max(self.maxs, n + 1)
            self.items.append(ins)
        return self.items[-1]

    def newlabel(self, hint='L'):
        self.nlab += 1
        return f'{self.name}_{hint}{self.nlab}'

    def label(self, name):
        self.items.append(('L', name))

    def finalize(self):
        blocks, cur, names = [], [], {}
        lab_of = []
        curlab = None

        def close():
            nonlocal cur, curlab
            blocks.append(cur)
            lab_of.append(curlab)
            cur, curlab = [], None

        for it in self.items:
            if isinstance(it, tuple):
                if cur or curlab is not None:
                    close()
                curlab = it[1]
                names[it[1]] = len(blocks)
            else:
                cur.append(it)
                if it.cls in ('branch', 'end'):
                    close()
        if cur or curlab is not None:
            close()
        n = len(blocks)
        succ = []
        for i, b in enumerate(blocks):
            sc = []
            last = b[-1] if b else None
            if last is not None and last.cls == 'end':
                pass
            elif last is not None and last.cls == 'branch':
                sc.append(names[last.target])
                if last.op != 's_branch':
                    sc.append(i + 1)
            else:
                if i + 1 < n:
                    sc.append(i + 1)
            succ.append(sc)
        ins_st = [None] * n
        ins_st[0] = St()
        outs = [None] * n
        work = [0]
        while work:
            i = work.pop(0)
            st = ins_st[i].copy()
            out = []
            for ins in blocks[i]:
                step(ins, st, out)
            outs[i] = out
            for j in succ[i]:
                if ins_st[j] is None:
                    ins_st[j] = st.copy()
                    if j not in work:
                        work.append(j)
                elif ins_st[j].merge(st):
                    if j not in work:
                        work.append(j)
        lines = []
        for i in range(n):
            if lab_of[i]:
                lines.append(lab_of[i] + ':')
            assert outs[i] is not None, f'unreachable block {lab_of[i]} in {self.name}'
            lines += ['  ' + x for x in outs[i]]
        return lines


def emit_file(path, kernels, launches):
    hdr = open('interleave_layers__spectral_gfnet__softmax_full_mha__prompt.s.ref').read().split('; @launch')[0]
    o = hdr
    for (name, grid, block, lds) in launches:
        o += f'; @launch kernel={name} grid=({grid},1,1) block=({block},1,1) lds={lds}\n'
    o += '.amdgcn_target "amdgcn-amd-amdhsa--gfx950"\n.text\n'
    for k in kernels:
        o += f'.globl {k.name}\n.p2align 8\n.type {k.name},@function\n{k.name}:\n'
        o += '\n'.join(k.finalize()) + '\n'
    o += '.section .rodata,"a"\n'
    for k in kernels:
        nv = max(k.maxv, 8)
        acc = (nv + 3) // 4 * 4
        tot = acc + k.maxa if k.maxa else nv
        o += f""".p2align 6
.amdhsa_kernel {k.name}
  .amdhsa_next_free_vgpr {tot}
  .amdhsa_next_free_sgpr {max(k.maxs, 16)}
  .amdhsa_accum_offset {acc}
  .amdhsa_group_segment_fixed_size 0
  .amdhsa_kernarg_size 72
  .amdhsa_user_sgpr_count 2
  .amdhsa_user_sgpr_kernarg_segment_ptr 1
  .amdhsa_system_sgpr_workgroup_id_x 1
.end_amdhsa_kernel
"""
    open(path, 'w').write(o)
    return o
```

```python
import struct
from asmlib import *
from layout import *

def f2u(x):
    return struct.unpack('<I', struct.pack('<f', x))[0]
def fl(x):
    return f'0x{f2u(x):08x}'

WS = 24
def prologue(k, ngrid, need_inputs=True):
    if need_inputs:
        k('s_load_dwordx16 s[4:19], s[0:1], 0')
    k('s_load_dwordx2 s[20:21], s[0:1], 64')
    lab = k.newlabel('go')
    k(f's_cmp_lt_u32 s2, {ngrid}')
    k(f's_cbranch_scc1 {lab}')
    k('s_endpgm')
    k.label(lab)

def srd(k, d, base, nbytes):
    k(f's_mov_b32 s{d}, s{base}')
    k(f's_mov_b32 s{d+1}, s{base+1}')
    k(f's_mov_b32 s{d+2}, {nbytes}')
    k(f's_mov_b32 s{d+3}, 0x00020000')

def lane_ids(k, vl, vc, vg, sw):
    k(f'v_lshrrev_b32 v{vl}, 6, v0')
    k(f'v_and_b32 v{vc}, 15, v0')
    k(f'v_readfirstlane_b32 s{sw}, v{vl}')
    k(f'v_and_b32 v{vl}, 63, v0')
    k(f'v_lshrrev_b32 v{vg}, 4, v{vl}')

def inter(main, *fills):
    out = []
    n = len(main)
    idx = [0] * len(fills)
    for t in range(n):
        out.append(main[t])
        for j, l in enumerate(fills):
            want = (t + 1) * len(l) // n
            while idx[j] < want:
                out.append(l[idx[j]]); idx[j] += 1
    return out
def emit(k, lst):
    for x in lst:
        k(x)
OOR = 0x40000000
```

```python
from common import *

N_A, N_B, N_C, N_E, N_F, N_G = 288, 64, 80, 126, 41, 41
K1_GRID = N_A + N_B + N_C + N_E + N_F + N_G
K1_LDS = 36864
INV576 = 1.0 / 576.0

def reduce_angle(k, vdst, vm, vt, s576):
    k(f'v_cvt_f32_u32 v{vdst}, v{vm}')
    k(f'v_mul_f32 v{vt}, {fl(INV576)}, v{vdst}')
    k(f'v_floor_f32 v{vt}, v{vt}')
    k(f'v_fma_f32 v{vdst}, v{vt}, s{s576}, v{vdst}')

def build_k1():
    k = Kern('k1_kernel')
    prologue(k, K1_GRID)
    VL, VC, VG = 1, 2, 3
    SW = 3
    lane_ids(k, VL, VC, VG, SW)
    k('s_mov_b32 s40, 0xc4100000')
    k(f's_mov_b32 s41, {fl(INV576)}')
    LB, LC, LE, LF, LG = [k.newlabel(x) for x in 'BCEFG']
    k(f's_cmp_ge_u32 s2, {N_A}')
    k(f's_cbranch_scc1 {LB}')
    k('s_and_b32 s42, s2, 7')
    k('s_lshl_b32 s42, s42, 1')
    k('s_bfe_u32 s43, s2, 0x10003')
    k('s_add_u32 s42, s42, s43')
    k('s_lshr_b32 s43, s2, 4')
    k('s_and_b32 s44, s3, 1')
    k('s_lshl_b32 s44, s44, 10')
    k('s_lshl_b32 s45, s42, 1')
    k('s_add_u32 s44, s44, s45')
    k('s_lshr_b32 s45, s3, 1')
    k('s_add_u32 s44, s44, s45')
    k('s_mul_i32 s44, s44, 1152')
    k(f's_add_u32 s45, s44, {512*1152}')
    k(f'v_mul_u32_u24 v4, {32*1152}, v{VC}')
    k(f'v_lshl_add_u32 v4, v{VG}, 4, v4')
    srd(k, 28, 4, 2048*1152)
    srd(k, WS, 20, WS_END)
    XB = 48
    for ks in range(18):
        for tt in range(2):
            k(f'buffer_load_dwordx4 {v(XB + (ks*2+tt)*4, 4)}, v4, s[28:31], s{44+tt} offen offset:{ks*64}')
    k(f'v_lshrrev_b32 v5, 2, v{VC}')
    k(f'v_and_b32 v6, 3, v{VC}')
    k('v_lshl_add_u32 v5, v5, 3, v6')
    k('s_and_b32 s46, s3, 1')
    k('s_lshl_b32 s46, s46, 2')
    k('s_lshl_b32 s47, s43, 5')
    k('s_add_u32 s46, s46, s47')
    k('v_add_u32 v5, s46, v5')
    k('v_lshrrev_b32 v6, 1, v5')
    k('v_add_u32 v6, 1, v6')
    k('v_and_b32 v7, 1, v5')
    k('v_cvt_f32_u32 v7, v7')
    k('v_mul_f32 v7, 0x3e800000, v7')
    k('v_cmp_eq_u32 vcc, 0x23f, v5')
    k('v_cndmask_b32 v6, v6, 0, vcc')
    k('v_cndmask_b32 v7, v7, 0, vcc')
    k('v_cvt_f32_u32 v8, v6')
    k('v_mul_f32 v8, s41, v8')
    k('s_lshr_b32 s46, s3, 1')
    k('s_lshl_b32 s47, s46, 5')
    k(f'v_lshlrev_b32 v9, 3, v{VG}')
    k('v_add_u32 v9, s47, v9')
    k('v_mul_u32_u24 v9, v9, v6')
    k('v_lshlrev_b32 v10, 6, v6')
    k('s_lshl_b32 s47, s3, 10')
    k(f'v_lshlrev_b32 v11, 4, v{VL}')
    k('v_add_u32 v12, s47, v11')
    k('s_mul_i32 s48, s43, 36864')
    k(f's_add_u32 s48, s48, {FA}')
    k('s_add_u32 s48, s48, s47')
    k('s_cmp_eq_u32 s42, 0')
    k('s_cselect_b32 s48, s48, 0x40000000')
    for m in range(9):
        T = 16 + (m & 1) * 12
        reduce_angle(k, T, 9, 13, 40)
        k(f'v_fma_f32 v{T}, v{T}, s41, v7')
        if m < 8:
            k('v_add_u32 v9, v9, v10')
        for i in range(1, 8):
            k(f'v_add_f32 v{T+i}, v{T+i-1}, v8')
        for i in range(8):
            k(f'v_cos_f32 v{T+i}, v{T+i}')
        for i in range(4):
            k(f'v_cvt_pk_bf16_f32 v{T+8+i}, v{T+2*i}, v{T+2*i+1}')
        k(f'ds_write_b128 v12, {v(T+8,4)} offset:{m*4096}')
        k(f'buffer_store_dwordx4 {v(T+8,4)}, v11, s[24:27], s48 offen')
        if m < 8:
            k('s_add_u32 s48, s48, 4096')
    k('s_barrier')
    ACC = 192
    FRG = 16
    def rd(ks):
        for tile in range(2):
            k(f'ds_read_b128 {v(FRG + (ks%3)*8 + tile*4, 4)}, v11 offset:{(ks*2+tile)*1024}')
    rd(0); rd(1)
    for ks in range(18):
        if ks + 2 < 18:
            rd(ks + 2)
        for tt in range(2):
            for tile in range(2):
                A = ACC + (tile*2+tt)*4
                Cop = '0' if ks == 0 else v(A, 4)
                k(f'v_mfma_f32_16x16x32_bf16 {v(A,4)}, {v(FRG + (ks%3)*8 + tile*4, 4)}, {v(XB + (ks*2+tt)*4, 4)}, {Cop}')
    k(f's_mov_b32 s46, {fl(C_AMP)}')
    k('s_cmp_eq_u32 s43, 17')
    k(f's_cselect_b32 s47, {fl(1.0/24)}, s46')
    k('v_mov_b32 v5, s46')
    k('v_mov_b32 v6, s47')
    k(f'v_cmp_eq_u32 vcc, 3, v{VG}')
    k('v_cndmask_b32 v5, v5, v6, vcc')
    k('s_lshl_b32 s47, s42, 3')
    k('s_lshl_b32 s48, s3, 1')
    k('s_add_u32 s47, s47, s48')
    k('s_mul_i32 s47, s47, 18432')
    k('s_lshl_b32 s48, s43, 10')
    k('s_add_u32 s47, s47, s48')
    k('s_add_u32 s48, s47, 18432')
    for tt in range(2):
        for tile in range(2):
            A = ACC + (tile*2+tt)*4
            for r in range(4):
                if tile == 1 and r >= 2:
                    k(f'v_mul_f32 v{A+r}, v5, v{A+r}')
                else:
                    k(f'v_mul_f32 v{A+r}, s46, v{A+r}')
            for h in range(2):
                k(f'v_cvt_pk_bf16_f32 v{16+tt*4+tile*2+h}, v{A+2*h}, v{A+2*h+1}')
        k(f'buffer_store_dwordx4 {v(16+tt*4,4)}, v11, s[24:27], s{47+tt} offen')
    k('s_endpgm')
    k.label(LB)
    k(f's_cmp_ge_u32 s2, {N_A+N_B}')
    k(f's_cbranch_scc1 {LC}')
    k(f's_sub_u32 s42, s2, {N_A}')
    k('s_lshl_b32 s42, s42, 5')
    k('s_lshl_b32 s43, s3, 3')
    k('s_add_u32 s42, s42, s43')
    k(f'v_lshrrev_b32 v4, 3, v{VL}')
    k('v_add_u32 v4, s42, v4')
    k('v_and_b32 v5, 63, v4')
    k('v_lshrrev_b32 v6, 6, v4')
    k('v_lshl_add_u32 v5, v5, 5, v6')
    k('v_mul_u32_u24 v5, 1152, v5')
    k(f'v_and_b32 v6, 7, v{VL}')
    k('v_lshl_add_u32 v5, v6, 4, v5')
    srd(k, 28, 4, 2048*1152)
    srd(k, WS, 20, WS_END)
    for m in range(9):
        k(f'buffer_load_dwordx4 {v(16+4*m,4)}, v5, s[28:31], 0 offen offset:{128*m}')
    U = 64
    k('s_mov_b32 s44, 0xffff0000')
    for i in range(36):
        k(f'v_lshlrev_b32 v{U+2*i}, 16, v{16+i}')
        k(f'v_and_b32 v{U+2*i+1}, s44, v{16+i}')
    for q in range(4):
        k(f'v_add_f32 v{8+q}, v{U+q}, v{U+4+q}')
    for i in range(8, 72):
        k(f'v_add_f32 v{8+(i&3)}, v{8+(i&3)}, v{U+i}')
    def red8(r):
        k(f'v_add_f32 v{r}, v{r}, v{r+1}')
        k(f'v_add_f32 v{r+2}, v{r+2}, v{r+3}')
        k(f'v_add_f32 v{r}, v{r}, v{r+2}')
        k(f'v_add_f32_dpp v{r}, v{r}, v{r} quad_perm:[1,0,3,2] row_mask:0xf bank_mask:0xf')
        k(f'v_add_f32_dpp v{r}, v{r}, v{r} quad_perm:[2,3,0,1] row_mask:0xf bank_mask:0xf')
        k(f'v_add_f32_dpp v{r}, v{r}, v{r} row_half_mirror row_mask:0xf bank_mask:0xf')
    red8(8)
    k('v_mul_f32 v12, s41, v8')
    for i in range(72):
        k(f'v_sub_f32 v{U+i}, v{U+i}, v12')
    for q in range(4):
        k(f'v_mul_f32 v{8+q}, v{U+q}, v{U+q}')
    for i in range(4, 72):
        k(f'v_fmac_f32 v{8+(i&3)}, v{U+i}, v{U+i}')
    red8(8)
    k('v_mov_b32 v9, 0')
    k('v_mov_b32 v10, 0')
    k('v_mov_b32 v11, 0')
    k('v_lshlrev_b32 v4, 4, v4')
    k('v_cmp_eq_u32 vcc, 0, v6')
    k('s_and_saveexec_b64 s[46:47], vcc')
    k(f's_mov_b32 s44, {SS}')
    k('buffer_store_dwordx4 v[8:11], v4, s[24:27], s44 offen')
    k('s_endpgm')
    k.label(LC)
    k(f's_cmp_ge_u32 s2, {N_A+N_B+N_C}')
    k(f's_cbranch_scc1 {LE}')
    k(f's_sub_u32 s42, s2, {N_A+N_B}')
    k('s_lshl_b32 s42, s42, 2')
    k('s_add_u32 s42, s42, s3')
    k('s_lshr_b32 s43, s42, 6')
    k('s_and_b32 s42, s42, 63')
    k('s_lshl_b32 s43, s43, 6')
    k(f'v_add_u32 v4, s43, v{VL}')
    k('v_lshlrev_b32 v5, 1, v4')
    k('v_add_u32 v5, 2, v5')
    k('s_mul_i32 s44, s42, 578')
    srd(k, 28, 6, 2048*578)
    srd(k, 32, 8, 2048*578)
    srd(k, WS, 20, WS_END)
    k('v_lshlrev_b32 v6, 13, v4')
    k('v_cmp_gt_u32 vcc, 0x120, v4')
    k('s_and_saveexec_b64 s[46:47], vcc')
    for f2 in range(32):
        k(f'buffer_load_ushort v{16+f2}, v5, s[28:31], s44 offen')
        k(f'buffer_load_ushort v{48+f2}, v5, s[32:35], s44 offen')
        if f2 < 31:
            k(f's_add_u32 s44, s44, {64*578}')
    k('s_lshl_b32 s45, s42, 7')
    k(f's_add_u32 s45, s45, {WT}')
    for q in range(8):
        for e in range(4):
            k(f'v_lshl_or_b32 v{16+4*q+e}, v{48+4*q+e}, 16, v{16+4*q+e}')
        k(f'buffer_store_dwordx4 {v(16+4*q,4)}, v6, s[24:27], s45 offen offset:{16*q}')
    k('s_endpgm')
    k.label(LE)
    k(f's_cmp_ge_u32 s2, {N_A+N_B+N_C+N_E}')
    k(f's_cbranch_scc1 {LF}')
    k(f's_sub_u32 s42, s2, {N_A+N_B+N_C}')
    k('s_lshl_b32 s42, s42, 2')
    k('s_add_u32 s42, s42, s3')
    k('s_lshl_b32 s42, s42, 2')
    srd(k, 28, 12, 576*3456)
    srd(k, WS, 20, WS_END)
    k(f'v_lshrrev_b32 v4, 2, v{VC}')
    k(f'v_and_b32 v5, 3, v{VC}')
    k('v_lshrrev_b32 v6, 1, v4')
    k('v_mul_u32_u24 v6, 18, v6')
    k('v_and_b32 v7, 1, v4')
    k('v_lshl_add_u32 v6, v7, 3, v6')
    k('v_add_u32 v6, v6, v5')
    k('v_mul_u32_u24 v7, 0x240, v4')
    k('v_lshrrev_b32 v8, 1, v5')
    k('v_mul_u32_u24 v8, 18, v8')
    k('v_add_u32 v7, v7, v8')
    k('v_and_b32 v8, 1, v5')
    k('v_add3_u32 v7, v7, v8, 16')
    k('v_mov_b32 v8, 0x10000000')
    k('v_cmp_eq_u32 vcc, 3, v4')
    k('v_cndmask_b32 v7, v7, v8, vcc')
    k(f'v_mul_u32_u24 v9, {8*3456}, v{VG}')
    k(f'v_lshlrev_b32 v11, 4, v{VL}')
    for i in range(4):
        k(f's_add_u32 s43, s42, {i}')
        k('s_mul_i32 s44, s43, 3641')
        k('s_lshr_b32 s44, s44, 16')
        k('s_mul_i32 s45, s44, 18')
        k('s_sub_u32 s45, s43, s45')
        k('s_mul_i32 s46, s44, 9363')
        k('s_lshr_b32 s46, s46, 16')
        k('s_mul_i32 s47, s46, 7')
        k('s_sub_u32 s47, s44, s47')
        k('s_lshr_b32 s48, s47, 1')
        k('s_mul_i32 s48, s48, 576')
        k('s_and_b32 s49, s47, 1')
        k('s_lshl_b32 s49, s49, 2')
        k('s_add_u32 s48, s48, s49')
        k('s_mul_i32 s49, s47, 18')
        k(f's_add_u32 s49, s49, {1152-90}')
        k('s_cmp_lt_u32 s47, 4')
        k('s_cselect_b32 s48, s48, s49')
        k('s_cselect_b64 s[50:51], -1, 0')
        k('s_cmp_eq_u32 s47, 4')
        k('s_cselect_b32 s48, 0, s48')
        k('s_cselect_b64 s[52:53], -1, 0')
        k('s_mul_i32 s49, s46, 36')
        k('s_add_u32 s48, s48, s49')
        k(f'v_cndmask_b32 v10, v{VC}, v6, s[50:51]')
        k('v_cndmask_b32 v10, v10, v7, s[52:53]')
        k('v_add_u32 v10, s48, v10')
        k('v_lshl_add_u32 v10, v10, 1, v9')
        k(f's_mul_i32 s49, s45, {32*3456}')
        D = 16 + 4*i
        for e in range(8):
            k(f'buffer_load_ushort v{D+e//2+(e&1)*16}, v10, s[28:31], s49 offen')
            if e < 7:
                k('s_add_u32 s49, s49, 3456')
        k('s_mul_i32 s49, s46, 18')
        k('s_add_u32 s49, s49, s45')
        k('s_mul_i32 s49, s49, 7')
        k('s_add_u32 s49, s49, s47')
        k('s_lshl_b32 s49, s49, 10')
        k(f's_add_u32 s{56+i}, s49, {WQT}')
    for i in range(4):
        for e in range(4):
            k(f'v_lshl_or_b32 v{16+4*i+e}, v{32+4*i+e}, 16, v{16+4*i+e}')
        k(f'buffer_store_dwordx4 {v(16+4*i,4)}, v11, s[24:27], s{56+i} offen')
    k('s_endpgm')
    def decode9(k):
        k('s_mul_i32 s44, s43, 3641')
        k('s_lshr_b32 s44, s44, 16')
        k('s_mul_i32 s45, s44, 18')
        k('s_sub_u32 s45, s43, s45')
        k('s_mul_i32 s46, s44, 7282')
        k('s_lshr_b32 s46, s46, 16')
        k('s_mul_i32 s47, s46, 9')
        k('s_sub_u32 s47, s44, s47')
        k('s_lshr_b32 s48, s47, 1')
        k('s_lshl_b32 s48, s48, 5')
        k('s_and_b32 s49, s47, 1')
        k('s_lshl_b32 s49, s49, 2')
        k('s_add_u32 s48, s48, s49')
        k('s_mul_i32 s49, s46, 144')
        k('s_add_u32 s48, s48, s49')
        k('s_cmp_eq_u32 s47, 8')
        k('s_cselect_b64 s[50:51], -1, 0')
        k(f'v_cndmask_b32 v10, v6, v{VC}, s[50:51]')
        k('v_add_u32 v10, s48, v10')
    def dest9(k, sd, ksoff):
        k('s_mul_i32 s49, s46, 36')
        k('s_add_u32 s49, s49, s45')
        k('s_mul_i32 s49, s49, 9')
        k('s_add_u32 s49, s49, s47')
        k('s_lshl_b32 s49, s49, 10')
        k(f's_add_u32 s{sd}, s49, {FBW + ksoff*9*1024}')
        k('s_cmp_lt_u32 s43, 648')
        k(f's_cselect_b32 s{sd}, s{sd}, 0x40000000')
    def common9(k, first):
        k(f's_sub_u32 s42, s2, {first}')
        k('s_lshl_b32 s42, s42, 2')
        k('s_add_u32 s42, s42, s3')
        k('s_lshl_b32 s42, s42, 2')
        srd(k, WS, 20, WS_END)
        k(f'v_lshrrev_b32 v4, 2, v{VC}')
        k(f'v_and_b32 v5, 3, v{VC}')
        k('v_lshl_add_u32 v6, v4, 3, v5')
        k(f'v_lshlrev_b32 v11, 4, v{VL}')
    k.label(LF)
    k(f's_cmp_ge_u32 s2, {N_A+N_B+N_C+N_E+N_F}')
    k(f's_cbranch_scc1 {LG}')
    common9(k, N_A+N_B+N_C+N_E)
    k(f's_mov_b32 s60, {fl(C_AMP)}')
    k(f's_mov_b32 s61, {fl(-C_AMP)}')
    k(f'v_mov_b32 v30, {fl(1.0/24)}')
    for i in range(4):
        k(f's_add_u32 s43, s42, {i}')
        decode9(k)
        dest9(k, 56, 0)
        k('s_lshl_b32 s48, s45, 4')
        k('s_add_u32 s48, s48, 1')
        k(f'v_lshl_add_u32 v12, v{VG}, 2, s48')
        k('v_mul_u32_u24 v13, v12, v10')
        k('v_cmp_eq_u32 vcc, 0x11d, v12')
        k('v_mov_b32 v31, s60')
        k('v_mov_b32 v32, s61')
        k('v_cndmask_b32 v31, v31, v30, vcc')
        k('v_cndmask_b32 v32, v32, 0, vcc')
        k('v_cndmask_b32 v33, 0, v30, vcc')
        for e in range(4):
            reduce_angle(k, 16+e, 13, 14, 40)
            k(f'v_mul_f32 v{16+e}, s41, v{16+e}')
            if e < 3:
                k('v_add_u32 v13, v13, v10')
        for e in range(4):
            k(f'v_sin_f32 v{20+e}, v{16+e}')
            k(f'v_cos_f32 v{16+e}, v{16+e}')
        for e in range(3):
            k(f'v_mul_f32 v{16+e}, s60, v{16+e}')
            k(f'v_mul_f32 v{20+e}, s61, v{20+e}')
        k('v_mul_f32 v19, v31, v19')
        k('v_fma_f32 v23, v32, v23, v33')
        for e in range(4):
            k(f'v_cvt_pk_bf16_f32 v{24+e}, v{16+e}, v{20+e}')
        k('buffer_store_dwordx4 v[24:27], v11, s[24:27], s56 offen')
    k('s_endpgm')
    k.label(LG)
    common9(k, N_A+N_B+N_C+N_E+N_F)
    srd(k, 28, 14, 576*1152)
    for i in range(4):
        k(f's_add_u32 s43, s42, {i}')
        decode9(k)
        dest9(k, 56+i, 18)
        k('s_lshl_b32 s48, s45, 5')
        k(f'v_lshl_add_u32 v12, v{VG}, 3, s48')
        k('v_lshrrev_b32 v13, 4, v12')
        k('v_mul_u32_u24 v13, 18, v13')
        k('v_and_b32 v14, 15, v12')
        k('v_add_u32 v13, v13, v14')
        k('v_subrev_u32 v14, 0x200, v12')
        k('v_mul_u32_u24 v14, 9, v14')
        k('v_add_u32 v14, 16, v14')
        k('s_movk_i32 s54, 1152')
        k('s_cmp_lt_u32 s45, 16')
        k('s_cselect_b64 s[50:51], -1, 0')
        k('s_cselect_b32 s52, s54, {}'.format(17*1152))
        k('v_cndmask_b32 v13, v14, v13, s[50:51]')
        k('v_mul_u32_u24 v13, 1152, v13')
        k('v_lshl_add_u32 v13, v10, 1, v13')
        k('s_mov_b32 s53, 0')
        D = 16 + 4*i
        for e in range(8):
            k(f'buffer_load_ushort v{D+e//2+(e&1)*16}, v13, s[28:31], s53 offen')
            if e < 7:
                k(f's_add_u32 s53, s53, {"1152" if e % 2 == 0 else "s52"}')
    for i in range(4):
        for e in range(4):
            k(f'v_lshl_or_b32 v{16+4*i+e}, v{32+4*i+e}, 16, v{16+4*i+e}')
        k(f'buffer_store_dwordx4 {v(16+4*i,4)}, v11, s[24:27], s{56+i} offen')
    k('s_endpgm')
    return k
```

```python
from common import *

N_FFT = 288
N_GEMM = 171
K2_GRID = N_FFT + N_GEMM
K2_LDS = 73728
K6_GRID = N_FFT
K6_LDS = 2 * 8704
RS = 272

def fft_role(k):
    VL, VC, VG = 1, 2, 3
    k('s_lshr_b32 s42, s2, 5')
    k('s_lshl_b32 s42, s42, 3')
    k('s_and_b32 s43, s2, 7')
    k('s_add_u32 s42, s42, s43')
    k('s_bfe_u32 s43, s2, 0x20003')
    k('s_lshl_b32 s44, s42, 8')
    k('s_lshl_b32 s45, s43, 2')
    k('s_add_u32 s44, s44, s45')
    k('s_mul_i32 s45, s3, 18432')
    k('s_add_u32 s44, s44, s45')
    k('s_lshl_b32 s42, s42, 2')
    k('s_add_u32 s42, s42, s43')
    k('s_lshl_b32 s52, s3, 8')
    k(f's_add_u32 s52, s52, {SS}')
    k('s_add_u32 s53, s52, 16384')
    k(f'v_lshlrev_b32 v4, 4, v{VC}')
    k(f'v_lshl_add_u32 v5, v{VG}, 12, v4')
    k(f'v_mul_u32_u24 v6, {16*18432}, v{VG}')
    k('v_add_u32 v4, v4, v6')
    srd(k, WS, 20, WS_END)
    XV, SSV, WV, CA, TC, TS, CB, TMP, ACC = 16, 24, 56, 64, 96, 104, 112, 136, 152
    for i in range(1, 8):
        a_, r = i >> 2, i & 3
        k(f's_add_u32 s{44+i}, s44, {(16*a_+r)*73728}')
    for i in range(8):
        a_, r = i >> 2, i & 3
        k(f'buffer_load_dwordx4 {v(SSV+4*i,4)}, v5, s[24:27], s{52+a_} offen offset:{r*1024}')
        k(f'buffer_load_dword v{XV+i}, v4, s[24:27], s{44+i} offen')
    k('s_lshl_b32 s54, s42, 13')
    k('s_lshl_b32 s55, s3, 11')
    k('s_add_u32 s54, s54, s55')
    k(f's_add_u32 s54, s54, {WT}')
    k(f'v_lshlrev_b32 v6, 7, v{VC}')
    k(f'v_lshl_add_u32 v6, v{VG}, 4, v6')
    for a_ in range(2):
        k(f'buffer_load_dwordx4 {v(WV+4*a_,4)}, v6, s[24:27], s54 offen offset:{a_*64}')
    k('s_cmp_eq_u32 s42, 287')
    k('s_cselect_b32 s55, 0, 1.0')
    k('s_lshl_b32 s56, s3, 4')
    k(f'v_add_u32 v9, s56, v{VC}')
    k(f'v_mul_u32_u24 v7, {4*RS}, v{VG}')
    k('v_lshl_add_u32 v7, v9, 2, v7')
    k(f'v_mul_u32_u24 v8, {RS}, v{VC}')
    k(f'v_lshl_add_u32 v8, v{VG}, 4, v8')
    k('v_cvt_f32_u32 v9, v9')
    k(f'v_lshlrev_b32 v10, 2, v{VG}')
    k('v_cvt_f32_u32 v10, v10')
    k(f'v_mul_f32 v11, {fl(1/64)}, v9')
    k('v_mul_f32 v12, v11, v10')
    for ks in range(4):
        for e in range(4):
            n = 16*ks + e
            if n == 0:
                k(f'v_mov_b32 v{TMP}, v12')
            else:
                k(f'v_fmamk_f32 v{TMP+e}, v11, {fl(float(n))}, v12')
        for e in range(4):
            k(f'v_sin_f32 v{TMP+4+e}, v{TMP+e}')
            k(f'v_cos_f32 v{TMP+e}, v{TMP+e}')
        for e in range(4):
            k(f'v_cvt_pk_bf16_f32 v{CA+ks*8+e}, v{TMP+e}, v{TMP+4+e}')
            k(f'v_cvt_pk_bf16_f32 v{CA+ks*8+4+e}, -v{TMP+4+e}, v{TMP+e}')
    k(f'v_mul_f32 v11, {fl(1/2048)}, v9')
    k('v_mul_f32 v12, v11, v10')
    for i in range(8):
        n = 16*(i >> 2) + (i & 3)
        if n == 0:
            k(f'v_mov_b32 v{TC}, v12')
        else:
            k(f'v_fmamk_f32 v{TC+i}, v11, {fl(float(n))}, v12')
    for i in range(8):
        k(f'v_sin_f32 v{TS+i}, v{TC+i}')
        k(f'v_cos_f32 v{TC+i}, v{TC+i}')
    k(f'v_cvt_f32_u32 v9, v{VC}')
    k(f'v_mul_f32 v11, {fl(1/32)}, v9')
    k('v_mul_f32 v12, v11, v10')
    for i in range(8):
        n = 16*(i >> 2) + (i & 3)
        if n == 0:
            k(f'v_mov_b32 v{TMP}, v12')
        else:
            k(f'v_fmamk_f32 v{TMP+i}, v11, {fl(float(n))}, v12')
    for i in range(8):
        k(f'v_sin_f32 v{TMP+8+i}, v{TMP+i}')
        k(f'v_cos_f32 v{TMP+i}, v{TMP+i}')
    C = [CB, CB+12]; S_ = [CB+4, CB+16]; NS = [CB+8, CB+20]
    for q in range(4):
        k(f'v_cvt_pk_bf16_f32 v{C[0]+q}, v{TMP+2*q}, v{TMP+2*q+1}')
        k(f'v_cvt_pk_bf16_f32 v{C[1]+q}, v{TMP+2*q}, -v{TMP+2*q+1}')
        k(f'v_cvt_pk_bf16_f32 v{S_[0]+q}, v{TMP+8+2*q}, v{TMP+9+2*q}')
        k(f'v_cvt_pk_bf16_f32 v{S_[1]+q}, v{TMP+8+2*q}, -v{TMP+9+2*q}')
        k(f'v_cvt_pk_bf16_f32 v{NS[0]+q}, -v{TMP+8+2*q}, -v{TMP+9+2*q}')
        k(f'v_cvt_pk_bf16_f32 v{NS[1]+q}, -v{TMP+8+2*q}, v{TMP+9+2*q}')
    k(f's_mov_b32 s56, {fl(4194304.0/576)}')
    k(f'v_mov_b32 v13, {fl(1e-5*4194304.0)}')
    k('s_mov_b32 s57, 0xffff0000')
    XU = 168
    for i in range(8):
        b = SSV + 4*i
        k(f'v_add_f32 v{b}, v{b}, v{b+1}')
        k(f'v_add_f32 v{b+2}, v{b+2}, v{b+3}')
        k(f'v_add_f32 v{b}, v{b}, v{b+2}')
        k(f'v_fma_f32 v{b}, v{b}, s56, v13')
        k(f'v_rsq_f32 v{b}, v{b}')
        k(f'v_lshlrev_b32 v{XU+i}, 16, v{XV+i}')
        k(f'v_and_b32 v{XU+8+i}, s57, v{XV+i}')
        k(f'v_mul_f32 v{b+1}, s55, v{b}')
        k(f'v_mul_f32 v{b+2}, v{b}, v{XU+i}')
        k(f'v_mul_f32 v{b+3}, v{b+1}, v{XU+8+i}')
        k(f'v_cvt_pk_bf16_f32 v{b}, v{b+2}, v{b+3}')
        k(f'ds_write_b32 v7, v{b} offset:{(16*(i>>2)+(i&3))*RS}')
    k('s_barrier')
    AF = 24
    YR, YI = ACC, ACC + 8
    def stageA(base):
        for ks in range(4):
            for a_ in range(2):
                k(f'ds_read_b128 {v(AF+(ks*2+a_)*4,4)}, v8 offset:{base + a_*16*RS + ks*64}')
        for ks in range(4):
            for a_ in range(2):
                for c_, Y in ((0, YR), (1, YI)):
                    Cop = '0' if ks == 0 else v(Y+4*a_, 4)
                    k(f'v_mfma_f32_16x16x32_bf16 {v(Y+4*a_,4)}, {v(AF+(ks*2+a_)*4,4)}, {v(CA+ks*8+4*c_,4)}, {Cop}')
    stageA(0)
    WR_, WI_ = 184, 192
    for i in range(8):
        k(f'v_lshlrev_b32 v{WR_+i}, 16, v{WV+i}')
        k(f'v_and_b32 v{WI_+i}, s57, v{WV+i}')
    PR, PI = TMP, TMP + 4
    T0 = TMP + 8
    def cmul(cr, ci, sgn, pack):
        for h in range(4):
            for e in range(2):
                i = 2*h + e
                k(f'v_mul_f32 v{T0+e}, v{YI+i}, v{ci+i}')
                k(f'v_mul_f32 v{T0+2+e}, v{YR+i}, v{ci+i}')
                n1 = '-' if sgn > 0 else ''
                n2 = '' if sgn > 0 else '-'
                k(f'v_fma_f32 v{YR+i}, v{YR+i}, v{cr+i}, {n1}v{T0+e}')
                k(f'v_fma_f32 v{YI+i}, v{YI+i}, v{cr+i}, {n2}v{T0+2+e}')
            pack(h)
    def packB(h):
        k(f'v_cvt_pk_bf16_f32 v{PR+h}, v{YR+2*h}, v{YR+2*h+1}')
        k(f'v_cvt_pk_bf16_f32 v{PI+h}, v{YI+2*h}, v{YI+2*h+1}')
    def stageB(Sa, Sb):
        for a_ in range(2):
            k(f'v_mfma_f32_16x16x32_bf16 {v(YR+4*a_,4)}, {v(C[a_],4)}, {v(PR,4)}, 0')
            k(f'v_mfma_f32_16x16x32_bf16 {v(YI+4*a_,4)}, {v(C[a_],4)}, {v(PI,4)}, 0')
        for a_ in range(2):
            k(f'v_mfma_f32_16x16x32_bf16 {v(YR+4*a_,4)}, {v(Sa[a_],4)}, {v(PI,4)}, {v(YR+4*a_,4)}')
            k(f'v_mfma_f32_16x16x32_bf16 {v(YI+4*a_,4)}, {v(Sb[a_],4)}, {v(PR,4)}, {v(YI+4*a_,4)}')
    cmul(TC, TS, -1, packB)
    stageB(S_, NS)
    cmul(WR_, WI_, +1, packB)
    stageB(NS, S_)
    def packL(h):
        for e in range(2):
            i = 2*h + e
            k(f'v_cvt_pk_bf16_f32 v{PR+(i&7)}, v{YR+i}, -v{YI+i}')
            k(f'ds_write_b32 v7, v{PR+(i&7)} offset:{8704 + (16*(i>>2)+(i&3))*RS}')
    cmul(TC, TS, +1, packL)
    k('s_barrier')
    stageA(8704)
    for i in range(8):
        k(f'v_add_f32 v{XU+i}, v{XU+i}, v{YR+i}')
        k(f'v_fma_f32 v{XU+8+i}, -v{YI+i}, s55, v{XU+8+i}')
        k(f'v_cvt_pk_bf16_f32 v{XV+i}, v{XU+i}, v{XU+8+i}')
        k(f'buffer_store_dword v{XV+i}, v4, s[24:27], s{44+i} offen')
    k('s_endpgm')

def gemm_role(k):
    VL, VC, VG = 1, 2, 3
    k(f's_sub_u32 s42, s2, {N_FFT}')
    k('s_and_b32 s43, s42, 15')
    k('s_lshr_b32 s44, s42, 4')
    k('s_sub_u32 s45, s42, 144')
    k('s_mul_i32 s46, s45, 86')
    k('s_lshr_b32 s46, s46, 8')
    k('s_mul_i32 s47, s46, 3')
    k('s_sub_u32 s47, s45, s47')
    k('s_add_u32 s47, s47, 16')
    k('s_cmp_lt_u32 s42, 144')
    k('s_cselect_b32 s43, s43, s47')
    k('s_cselect_b32 s44, s44, s46')
    k('s_lshl_b32 s43, s43, 2')
    k('s_add_u32 s43, s43, s3')
    srd(k, WS, 20, WS_END)
    k(f'v_lshlrev_b32 v11, 4, v{VL}')
    k('v_add_u32 v10, 36864, v11')
    k('s_mul_i32 s45, s44, 73728')
    k(f's_add_u32 s45, s45, {FA}')
    k('s_lshr_b32 s46, s3, 1')
    k('s_mul_i32 s46, s46, 36864')
    k('s_and_b32 s47, s3, 1')
    k('s_lshl_b32 s47, s47, 10')
    k('s_add_u32 s46, s46, s47')
    k('s_add_u32 s45, s45, s46')
    LW = k.newlabel('wof')
    k('s_cmp_ge_u32 s43, 56')
    k(f's_cbranch_scc1 {LW}')
    DB = 64
    ACC = 208
    FRG = 16
    def dma_chunk(c):
        for q in range(3):
            k(f's_add_u32 m0, s46, {(6*c+2*q)*2048}')
            for h in range(2):
                k(f'buffer_load_dwordx4 v11, s[24:27], s45 offen offset:{h*2048} lds')
            k('s_add_u32 s45, s45, 4096')
    def mainloop(fa_is_A):
        def rd(ks):
            for s_ in range(2):
                for t2 in range(2):
                    k(f'ds_read_b128 {v(FRG+(ks&1)*16+(s_*2+t2)*4,4)}, v{11-s_} offset:{(ks*2+t2)*1024}')
        for c in range(3):
            k(f's_waitcnt vmcnt({(2-c)*18 + 12})')
            k('s_barrier')
            rd(6*c)
            for ks in range(6*c, 6*c+6):
                if ks + 1 < 6*c + 6:
                    rd(ks + 1)
                for e in range(2):
                    for s_ in range(2):
                        for t2 in range(2):
                            A = ACC + ((s_*2+t2)*2+e)*4
                            Cop = '0' if ks == 0 else v(A, 4)
                            fa = v(FRG+(ks&1)*16+(s_*2+t2)*4, 4)
                            d = v(DB+(ks*2+e)*4, 4)
                            x, y = (fa, d) if fa_is_A else (d, fa)
                            k(f'v_mfma_f32_16x16x32_bf16 {v(A,4)}, {x}, {y}, {Cop}')
    for e in range(2):
        k('s_lshl_b32 s48, s43, 1')
        if e: k('s_add_u32 s48, s48, 1')
        k('s_mul_i32 s49, s48, 9363')
        k('s_lshr_b32 s49, s49, 16')
        k('s_mul_i32 s50, s49, 7')
        k(f's_sub_u32 s{56+e}, s48, s50')
        k('s_mul_i32 s49, s49, 126')
        k(f's_add_u32 s49, s49, s{56+e}')
        k(f's_lshl_b32 s{58+e}, s49, 10')
        k(f's_add_u32 s{60+e}, s{58+e}, {WQT}')
    for c in range(3):
        dma_chunk(c)
        for ks in range(6*c, 6*c+6):
            for e in range(2):
                k(f'buffer_load_dwordx4 {v(DB+(ks*2+e)*4,4)}, v11, s[24:27], s{60+e} offen')
                k(f's_add_u32 s{60+e}, s{60+e}, 7168')
    k(f'v_mov_b32 v4, {fl(C_AMP)}')
    k(f'v_mov_b32 v5, {fl(C_AMP*QSCALE)}')
    k(f'v_cmp_gt_u32 s[62:63], 4, v{VC}')
    for e in range(2):
        k(f's_cmp_eq_u32 s{56+e}, 4')
        k('s_cselect_b64 s[64:65], s[62:63], 0')
        k(f's_cmp_lt_u32 s{56+e}, 2')
        k('s_cselect_b64 s[64:65], -1, s[64:65]')
        k(f'v_cndmask_b32 v{6+e}, v4, v5, s[64:65]')
    k(f'v_cmp_eq_u32 s[62:63], 3, v{VG}')
    k('s_cmp_eq_u32 s44, 8')
    k('s_cselect_b64 s[62:63], s[62:63], 0')
    k(f'v_mov_b32 v4, {fl(1/24/C_AMP)}')
    k('v_cndmask_b32 v8, 1.0, v4, s[62:63]')
    k('v_cndmask_b32 v9, 1.0, 0, s[62:63]')
    k('s_mul_i32 s48, s44, 14336')
    k(f's_add_u32 s48, s48, {GWF}')
    for e in range(2):
        k(f's_add_u32 s{58+e}, s{58+e}, s48')
        k(f's_add_u32 s{60+e}, s{58+e}, 7168')
    mainloop(True)
    for e in range(2):
        for s_ in range(2):
            O = 16 + (e*2+s_)*4
            for t2 in range(2):
                A = ACC + ((s_*2+t2)*2+e)*4
                for r in range(4):
                    k(f'v_mul_f32 v{A+r}, v{6+e}, v{A+r}')
                if s_ == 1 and t2 == 1:
                    k(f'v_mul_f32 v{A+2}, v8, v{A+2}')
                    k(f'v_mul_f32 v{A+3}, v9, v{A+3}')
                for h in range(2):
                    k(f'v_cvt_pk_bf16_f32 v{O+t2*2+h}, v{A+2*h}, v{A+2*h+1}')
            k(f'buffer_store_dwordx4 {v(O,4)}, v11, s[24:27], s{58+2*s_+e} offen')
    k('s_endpgm')
    k.label(LW)
    k('s_sub_u32 s43, s43, 56')
    srd(k, 28, 14, 576*1152)
    k(f'v_lshrrev_b32 v4, 2, v{VC}')
    k(f'v_and_b32 v5, 3, v{VC}')
    k('v_lshl_add_u32 v4, v4, 3, v5')
    k('s_lshl_b32 s48, s43, 5')
    for e in range(2):
        k(f'v_add_u32 v5, s48, v4')
        if e: k('v_add_u32 v5, 4, v5')
        k('v_lshrrev_b32 v6, 4, v5')
        k('v_mul_u32_u24 v6, 18, v6')
        k('v_and_b32 v7, 15, v5')
        k('v_add_u32 v6, v6, v7')
        k('v_subrev_u32 v7, 0x200, v5')
        k('v_lshrrev_b32 v8, 1, v7')
        k('v_mul_u32_u24 v8, 18, v8')
        k('v_and_b32 v7, 1, v7')
        k('v_add3_u32 v7, v7, v8, 16')
        k('v_cmp_gt_u32 vcc, 0x200, v5')
        k('v_cndmask_b32 v6, v7, v6, vcc')
        k('v_mul_u32_u24 v6, 1152, v6')
        k(f'v_lshl_add_u32 v{12+e}, v{VG}, 4, v6')
    for c in range(3):
        dma_chunk(c)
        for ks in range(6*c, 6*c+6):
            for e in range(2):
                k(f'buffer_load_dwordx4 {v(DB+(ks*2+e)*4,4)}, v{12+e}, s[28:31], 0 offen offset:{ks*64}')
    k('s_lshl_b32 s48, s44, 6')
    k(f'v_mov_b32 v14, {fl(C_AMP)}')
    k(f'v_mov_b32 v15, {fl(1/24)}')
    for s_ in range(2):
        for t2 in range(2):
            i = s_*2 + t2
            k(f's_add_u32 s49, s48, {32*s_+4*t2}')
            k('v_add_u32 v5, s49, v4')
            k('v_cmp_lt_u32 vcc, 0x23d, v5')
            k(f'v_cndmask_b32 v{52+i}, v14, v15, vcc')
            k('v_lshrrev_b32 v6, 4, v5')
            k('v_mul_u32_u24 v6, 57, v6')
            k('v_lshrrev_b32 v6, 9, v6')
            k('v_mul_u32_u24 v7, 0x90, v6')
            k('v_sub_u32 v5, v5, v7')
            k('v_lshrrev_b32 v7, 5, v5')
            k('v_lshlrev_b32 v7, 11, v7')
            k('v_bfe_u32 v8, v5, 2, 1')
            k('v_lshl_add_u32 v7, v8, 10, v7')
            k('v_bfe_u32 v8, v5, 3, 2')
            k('v_lshl_add_u32 v7, v8, 6, v7')
            k('v_and_b32 v8, 3, v5')
            k('v_lshl_add_u32 v7, v8, 4, v7')
            k('v_lshlrev_b32 v8, 4, v5')
            k(f'v_add_u32 v8, {8192-2048}, v8')
            k('v_cmp_gt_u32 vcc, 0x80, v5')
            k('v_cndmask_b32 v7, v8, v7, vcc')
            k(f'v_mul_u32_u24 v6, {18*9*1024}, v6')
            k(f'v_lshl_add_u32 v6, v{VG}, 8, v6')
            k(f'v_add_u32 v{48+i}, v6, v7')
    k('s_mul_i32 s48, s43, 9216')
    k(f's_add_u32 s48, s48, {WOF}')
    k('s_cmp_lt_u32 s43, 18')
    k('s_cselect_b32 s48, s48, 0x40000000')
    mainloop(False)
    for s_ in range(2):
        for t2 in range(2):
            i = s_*2 + t2
            O = 16 + i*4
            for e in range(2):
                A = ACC + (i*2+e)*4
                for r in range(4):
                    k(f'v_mul_f32 v{A+r}, v{52+i}, v{A+r}')
                for h in range(2):
                    k(f'v_cvt_pk_bf16_f32 v{O+e*2+h}, v{A+2*h}, v{A+2*h+1}')
            k(f'buffer_store_dwordx4 {v(O,4)}, v{48+i}, s[24:27], s48 offen')
    k('s_endpgm')

def build_k2():
    k = Kern('k2_kernel')
    prologue(k, K2_GRID)
    lane_ids(k, 1, 2, 3, 3)
    LG = k.newlabel('gemm')
    k(f's_cmp_ge_u32 s2, {N_FFT}')
    k(f's_cbranch_scc1 {LG}')
    fft_role(k)
    k.label(LG)
    gemm_role(k)
    return k

def build_k6():
    k = Kern('k6_kernel')
    prologue(k, K6_GRID, need_inputs=False)
    lane_ids(k, 1, 2, 3, 3)
    fft_role(k)
    return k
```

```python
from common import *

K3_GRID = 256
K3_LDS = 129024 + 512
QH = 73728

def build_k3(name='k3_kernel'):
    k = Kern(name)
    prologue(k, K3_GRID, need_inputs=False)
    VL, VC, VG = 1, 2, 3
    lane_ids(k, VL, VC, VG, 3)
    k('s_bfe_u32 s42, s2, 0x20001')
    k('s_lshl_b32 s42, s42, 2')
    k('s_bfe_u32 s43, s2, 0x20003')
    k('s_add_u32 s42, s42, s43')
    k('s_and_b32 s43, s2, 1')
    k('s_lshl_b32 s43, s43, 3')
    k('s_lshr_b32 s44, s2, 5')
    k('s_add_u32 s43, s43, s44')
    k('s_lshl_b32 s42, s42, 2')
    k('s_add_u32 s42, s42, s3')
    k('s_mul_i32 s44, s42, 36864')
    k('s_mul_i32 s50, s43, 129024')
    k(f's_add_u32 s50, s50, {GWF}')
    k('s_mul_i32 s51, s3, 7168')
    k(f'v_lshlrev_b32 v11, 4, v{VL}')
    k(f'v_lshrrev_b32 v4, 3, v{VC}')
    k('v_mul_u32_u24 v4, 0x4800, v4')
    k(f'v_lshl_add_u32 v4, v{VG}, 8, v4')
    k(f'v_bfe_u32 v5, v{VC}, 2, 1')
    k('v_lshl_add_u32 v4, v5, 7, v4')
    k(f'v_and_b32 v5, 3, v{VC}')
    k('v_lshl_add_u32 v4, v5, 4, v4')
    srd(k, WS, 20, WS_END)
    XA = 48
    ACC = 192
    BF = 256
    def issue_chunk(c):
        if c < 4:
            for (f0, n) in ((0, 4), (4, 3)):
                k(f's_add_u32 m0, s51, {(28*c+f0)*1024}')
                k(f's_add_u32 s52, s50, m0')
                for q in range(n):
                    k(f'buffer_load_dwordx4 v11, s[24:27], s52 offen offset:{q*1024} lds')
        else:
            k('s_lshl_b32 s52, s3, 12')
            k('s_min_u32 s52, s52, 10240')
            k(f's_add_u32 m0, s52, {112*1024}')
            k(f's_add_u32 s52, s50, m0')
            for q in range(4):
                k(f'buffer_load_dwordx4 v11, s[24:27], s52 offen offset:{q*1024} lds')
        for ks in range(4*c, min(4*c+4, 18)):
            for tp in range(2):
                k(f'buffer_load_dwordx4 {v(XA+(ks*2+tp)*4,4)}, v4, s[24:27], s44 offen offset:{(ks&3)*1024+tp*64}')
        if c < 4:
            k('s_add_u32 s44, s44, 4096')
    for c in range(4):
        issue_chunk(c)
    k('v_add_u32 v10, 0x10000, v11')
    k(f's_mul_i32 s54, s43, {2*QH}')
    k('s_mul_i32 s55, s42, 1152')
    k('s_add_u32 s54, s54, s55')
    k(f's_add_u32 s54, s54, {QI}')
    k(f's_mul_i32 s55, s43, {2*KVH}')
    k(f's_mul_i32 s56, s42, {KVT}')
    k('s_add_u32 s55, s55, s56')
    k(f's_add_u32 s55, s55, {KV}')
    k(f's_add_u32 s56, s55, {KVH}')
    k(f'v_lshrrev_b32 v5, 3, v{VC}')
    k(f'v_and_b32 v6, 7, v{VC}')
    k('v_lshl_add_u32 v5, v5, 4, v6')
    k(f'v_and_b32 v6, 1, v{VG}')
    k('v_lshlrev_b32 v6, 9, v6')
    k('v_lshl_add_u32 v6, v5, 4, v6')
    k(f'v_lshrrev_b32 v7, 1, v{VG}')
    k(f'v_mul_u32_u24 v12, {QH}, v7')
    k('v_add_u32 v12, v12, v6')
    k(f'v_mul_u32_u24 v13, {KVH}, v7')
    k('v_add_u32 v13, v13, v6')
    k(f'v_cmp_eq_u32 vcc, 4, v{VC}')
    k(f'v_cndmask_b32 v14, v{VC}, 18, vcc')
    k('v_lshlrev_b32 v14, 4, v14')
    k(f'v_mul_u32_u24 v6, 0x130, v{VG}')
    k('s_movk_i32 s57, 0x480')
    k('v_add3_u32 v14, v14, v6, s57')
    k(f'v_mov_b32 v7, {OOR}')
    k(f'v_cmp_eq_u32 s[58:59], 0, v{VG}')
    k(f'v_cmp_eq_u32 s[60:61], 1, v{VG}')
    k(f'v_cmp_eq_u32 s[62:63], 2, v{VG}')
    k(f'v_cmp_eq_u32 s[64:65], 3, v{VG}')
    k('v_lshlrev_b32 v5, 2, v5')
    k('v_add_u32 v5, 0x400, v5')
    k(f's_add_u32 s57, s54, {QH}')
    for e in range(2):
        k(f'v_mov_b32 v6, s{54 if e == 0 else 57}')
        k(f'v_cndmask_b32 v{15+e}, v7, v6, s[58:59]')
        k(f'v_mov_b32 v6, s{55+e}')
        k(f'v_cndmask_b32 v{15+e}, v{15+e}, v6, s[60:61]')
        k(f'v_add_u32 v{15+e}, v{15+e}, v5')
    k(f'v_lshrrev_b32 v5, 2, v{VC}')
    k('v_mul_u32_u24 v5, 0x130, v5')
    k(f'v_and_b32 v6, 3, v{VC}')
    k('v_lshl_add_u32 v5, v6, 1, v5')
    k(f'v_add_u32 v6, {1152+256}, v5')
    k('v_cndmask_b32 v17, v7, v6, s[62:63]')
    k(f'v_add_u32 v6, {1152+64}, v5')
    k('v_cndmask_b32 v17, v17, v6, s[64:65]')
    k(f'v_add_u32 v6, {1152+272}, v5')
    k('v_cndmask_b32 v18, v7, v6, s[62:63]')
    k('v_mov_b32 v6, 0xffff')
    k('v_cndmask_b32 v19, -1, v6, s[64:65]')
    k('s_lshl_b32 s57, s3, 7')
    k('s_add_u32 s57, s57, 129024')
    k(f'v_lshrrev_b32 v5, 5, v{VL}')
    k('v_lshlrev_b32 v5, 6, v5')
    k(f'v_lshl_add_u32 v5, v{VC}, 2, v5')
    k('v_add_u32 v20, s57, v5')
    k(f'v_lshlrev_b32 v5, 2, v{VC}')
    k('v_add_u32 v21, s57, v5')
    k(f'v_lshlrev_b32 v5, 4, v{VG}')
    k('v_add_u32 v22, s57, v5')
    k(f's_mov_b32 s66, {fl(1/576)}')
    k(f'v_mov_b32 v23, {fl(1e-5)}')
    DA = 24
    RC = 28
    RR = 32
    def rd(ks):
        out = []
        for tile in range(7):
            f = ks*7 + tile
            base, off = (11, f*1024) if f < 64 else (10, (f-64)*1024)
            out.append(f'ds_read_b128 {R(BF+(ks&1)*28+tile*4,4)}, v{base} offset:{off}')
        return out
    def dots(ks):
        out = []
        if ks == 17:
            for tp in range(2):
                x = XA + (ks*2+tp)*4 + 3
                out.append(f'v_and_b32 v{x}, v19, v{x}')
        for q in range(4):
            for tp in range(2):
                x = XA + (ks*2+tp)*4 + q
                d = DA + tp*2 + (q & 1)
                c_ = '0' if (ks == 0 and q < 2) else f'v{d}'
                out.append(f'v_dot2_f32_bf16 v{d}, v{x}, v{x}, {c_}')
        return out
    rchain = [
        f'v_add_f32 v{DA}, v{DA}, v{DA+1}',
        f'v_add_f32 v{DA+2}, v{DA+2}, v{DA+3}',
        f'v_permlane32_swap_b32 v{DA}, v{DA+2}',
        f'v_add_f32 v{DA}, v{DA}, v{DA+2}',
        f'v_mov_b32 v{DA+1}, v{DA}',
        f'v_permlane16_swap_b32 v{DA}, v{DA+1}',
        f'v_add_f32 v{DA}, v{DA}, v{DA+1}',
        f'v_fma_f32 v{DA}, v{DA}, s66, v23',
        f'v_rsq_f32 v{DA}, v{DA}',
        f'ds_write_b32 v20, v{DA}',
        f'ds_read2_b32 {v(RC,2)}, v21 offset0:0 offset1:16',
        f'ds_read_b128 {v(RR,4)}, v22',
        f'ds_read_b128 {v(RR+4,4)}, v22 offset:64',
    ]
    def mf(ks):
        out = []
        for tile in range(7):
            for tp in range(2):
                A = ACC + (tile*2+tp)*4
                Cop = '0' if ks == 0 else v(A, 4)
                b = R(BF+(ks&1)*28+tile*4, 4)
                x = v(XA+(ks*2+tp)*4, 4)
                p, q = (b, x) if tile < 5 else (x, b)
                out.append(f'v_mfma_f32_16x16x32_bf16 {v(A,4)}, {p}, {q}, {Cop}')
        return out
    for c in range(5):
        if c == 0:
            k(f's_waitcnt vmcnt({8 + 3*15})')
            k('s_barrier')
            issue_chunk(4)
        elif c < 4:
            k(f's_waitcnt vmcnt({8 + (3-c)*15 + 8})')
            k('s_barrier')
        else:
            k('s_waitcnt vmcnt(4)')
            k('s_barrier')
        lo, hi = 4*c, min(4*c+4, 18)
        emit(k, rd(lo))
        for ks in range(lo, hi):
            fill = []
            if ks + 1 < hi:
                fill = rd(ks+1)
            if ks < 16:
                d = dots(ks)
            elif ks == 16:
                d = dots(16) + dots(17)
            else:
                d = rchain
            emit(k, inter(mf(ks), fill, d))
    O = 48
    for which, (voff, soff) in enumerate(((12, 54), (13, 55))):
        for tp in range(2):
            o = O + (which*2+tp)*4
            for t2 in range(2):
                A = ACC + ((which*2+t2)*2+tp)*4
                for r in range(4):
                    k(f'v_mul_f32 v{A+r}, v{RC+tp}, v{A+r}')
                for h in range(2):
                    k(f'v_cvt_pk_bf16_f32 v{o+t2*2+h}, v{A+2*h}, v{A+2*h+1}')
            k(f'buffer_store_dwordx4 {v(o,4)}, v{voff}, s[24:27], s{soff} offen offset:{tp*128}')
    for e in range(2):
        o = O + 16 + e*4
        for tp in range(2):
            A = ACC + ((5+e)*2+tp)*4
            for r in range(4):
                k(f'v_mul_f32 v{A+r}, v{RR+tp*4+r}, v{A+r}')
            for h in range(2):
                k(f'v_cvt_pk_bf16_f32 v{o+tp*2+h}, v{A+2*h}, v{A+2*h+1}')
        k(f'buffer_store_dwordx4 {v(o,4)}, v14, s[24:27], s{55+e} offen')
    k('v_mov_b32 v6, 0x3f803f80')
    for tp in range(2):
        A = ACC + (4*2+tp)*4
        for r in range(4):
            k(f'v_mul_f32 v{A+r}, v{RC+tp}, v{A+r}')
        for e in range(2):
            o = O + 24 + tp*2 + e
            k(f'v_cvt_pk_bf16_f32 v{o}, v{A+2*e}, v{A+2*e+1}')
            k(f'v_cndmask_b32 v{o}, v{o}, v6, s[64:65]')
            k(f'buffer_store_dword v{o}, v{15+e}, s[24:27], 0 offen offset:{tp*32}')
            k(f'buffer_store_short v{o}, v17, s[24:27], s{55+e} offen offset:{tp*8}')
            k(f'buffer_store_short_d16_hi v{o}, v18, s[24:27], s{55+e} offen offset:{tp*8}')
    k('s_endpgm')
    return k
```

```python
from common import *
from gen_k3 import QH

K4_GRID = 256
K4_LDS = 64 * KVT + KVT
HALF = 32 * KVT
NT = 4

def build_k4(name='k4_kernel'):
    k = Kern(name)
    prologue(k, K4_GRID, need_inputs=False)
    QF1, QF2, KB1, KB2, VB, P, S, O = 8, 16, 20, 28, 32, 48, 64, 96
    AK1, AK2, AV, BK1, BK2, BV, MX0, MX1 = 56, 57, 58, 59, 60, 61, 62, 63
    k('v_lshrrev_b32 v1, 6, v0')
    k('v_readfirstlane_b32 s3, v1')
    k('v_and_b32 v1, 63, v0')
    k('s_and_b32 s40, s2, 7')
    k('s_lshl_b32 s40, s40, 2')
    k('s_lshr_b32 s41, s2, 6')
    k('s_add_u32 s40, s40, s41')
    k('s_bfe_u32 s41, s2, 0x30003')
    k('s_and_b32 s42, s3, 3')
    k('s_lshr_b32 s43, s3, 2')
    k('s_lshl_b32 s41, s41, 3')
    k('s_lshl_b32 s44, s42, 1')
    k('s_add_u32 s41, s41, s44')
    k('s_add_u32 s41, s41, s43')
    k(f's_mul_i32 s44, s40, {QH}')
    k(f's_add_u32 s44, s44, {QI}')
    k('s_mul_i32 s45, s41, 1152')
    k('s_xor_b32 s46, s41, 1')
    k('s_mul_i32 s46, s46, 1152')
    k('s_add_u32 s45, s45, s44')
    k('s_add_u32 s46, s46, s44')
    k(f's_mul_i32 s47, s40, {KVH}')
    k(f's_add_u32 s47, s47, {KV}')
    k(f's_mul_i32 s48, s43, {HALF}')
    k('s_lshl_b32 s49, s42, 10')
    k('s_add_u32 s49, s49, s48')
    k('v_lshlrev_b32 v2, 4, v1')
    k('v_and_b32 v3, 31, v1')
    k('v_lshlrev_b32 v4, 2, v3')
    k('v_lshrrev_b32 v5, 5, v1')
    k('v_lshl_or_b32 v6, v5, 30, v4')
    srd(k, WS, 20, WS_END)
    for qt in range(2):
        k(f'buffer_load_dwordx4 {v(QF1+4*qt,4)}, v2, s[24:27], s{45+qt} offen')
        k(f'buffer_load_dword v{QF2+2*qt}, v6, s[24:27], s{45+qt} offen offset:1024')
    for n in range(19):
        if n == 0:
            k('s_mov_b32 m0, s49')
        elif n < 18:
            k(f's_add_u32 m0, s49, {n*4096}')
        else:
            k('s_min_u32 s50, s42, 1')
            k('s_lshl_b32 s50, s50, 10')
            k('s_add_u32 s50, s50, s48')
            k(f's_add_u32 m0, s50, {72*1024}')
        k('s_add_u32 s50, s47, m0')
        k('buffer_load_dwordx4 v2, s[24:27], s50 offen lds')
    k(f'v_add_u32 v{BK1}, s48, v2')
    k('s_add_u32 s50, s48, 1024')
    k(f'v_add_u32 v{BK2}, s50, v4')
    k('v_and_b32 v7, 0x13, v3')
    k('v_bfe_u32 v6, v3, 2, 1')
    k('v_lshl_or_b32 v7, v6, 3, v7')
    k('v_bfe_u32 v6, v3, 3, 1')
    k('v_lshl_or_b32 v7, v6, 2, v7')
    k('v_cmp_eq_u32 vcc, 4, v7')
    k('v_cndmask_b32 v6, v7, 18, vcc')
    k('v_cmp_lt_u32 vcc, 17, v3')
    k('v_cndmask_b32 v6, v6, 4, vcc')
    k('v_lshlrev_b32 v6, 4, v6')
    k('v_mul_u32_u24 v4, 0x130, v5')
    k('s_add_u32 s50, s48, 1152')
    k(f'v_add3_u32 v{BV}, v6, v4, s50')
    k('v_lshrrev_b32 v4, 4, v3')
    k('v_mul_u32_u24 v4, 0x4800, v4')
    k('v_and_b32 v6, 15, v7')
    k('v_lshl_add_u32 v4, v6, 4, v4')
    k('v_lshl_add_u32 v3, v5, 8, v4')
    k('v_lshl_or_b32 v4, v5, 30, v4')
    k('s_mul_i32 s52, s41, 36864')
    k(f's_add_u32 s52, s52, {OR}')
    k('s_lshr_b32 s53, s40, 2')
    k('s_lshl_b32 s53, s53, 8')
    k('s_and_b32 s54, s40, 3')
    k('s_lshl_b32 s54, s54, 2')
    k('s_add_u32 s53, s53, s54')
    k('s_add_u32 s53, s53, s52')
    k('s_add_u32 s53, s53, 16384')
    k('s_lshl_b32 s54, s40, 9')
    k('s_add_u32 s52, s52, s54')
    k('s_mul_i32 s54, s3, 3072')
    k('v_add_u32 v5, s54, v2')
    k('s_xor_b32 s54, s3, 4')
    k('s_mul_i32 s54, s54, 3072')
    k('v_add_u32 v6, s54, v2')
    for b in range(2):
        k(f'v_mov_b32 v{KB2+2*b+1}, 0x3f803f80')
    k('s_mov_b32 s56, 0')
    k('s_mov_b32 s57, 0')
    k('s_mov_b32 s58, 3')
    k('s_mov_b32 s60, 0xffff0000')
    RETRY = k.newlabel('retry')
    k.label(RETRY)
    for r in range(32):
        k(f'v_mov_b32 v{O+r}, 0')
    for r in range(4):
        k(f'v_mov_b32 v{P+4+r}, 0')
        k(f'v_mov_b32 v{VB+12+r}, 0')
    for qt in range(2):
        k(f'v_mov_b32 v{QF2+2*qt+1}, 0')
        k(f'v_mov_b32 v{MX0+qt}, 0xff800000')
    k(f'v_mov_b32 v{AK1}, v{BK1}')
    k(f'v_mov_b32 v{AK2}, v{BK2}')
    k(f'v_mov_b32 v{AV}, v{BV}')
    k('s_mov_b32 s59, 0')
    L1 = k.newlabel('skipA')
    k('s_cmp_lg_u32 s57, 0')
    k(f's_cbranch_scc1 {L1}')
    k('s_waitcnt vmcnt(18)')
    k('s_barrier')
    k.label(L1)
    def qk(kb, qt):
        return [f'v_mfma_f32_32x32x16_bf16 {v(S+16*qt,16)}, {v(KB1+4*kb,4)}, {v(QF1+4*qt,4)}, 0',
                f'v_mfma_f32_32x32x8bf16_1k {v(S+16*qt,16)}, {v(KB2+2*kb,2)}, {v(QF2+2*qt,2)}, {v(S+16*qt,16)}']
    MP = k.newlabel('mp')
    k.label(MP)
    k(f'v_add_u32 v{P}, s56, v{BK1}')
    k(f'v_add_u32 v{P+1}, s56, v{BK2}')
    k(f'ds_read_b128 {v(KB1,4)}, v{P}')
    k(f'ds_read_b32 v{KB2}, v{P+1}')
    for sub in range(2):
        k(f'ds_read_b128 {v(VB+4*sub,4)}, v{BV} offset:{sub*608}')
    a0, a1 = qk(0, 0), qk(0, 1)
    emit(k, [a0[0], a1[0], a0[1], a1[1]])
    for qt in range(2):
        for j in range(8):
            k(f'v_max3_f32 v{MX0+qt}, v{S+16*qt+2*j}, v{S+16*qt+2*j+1}, v{MX0+qt}')
    k(f's_sub_u32 s56, s56, {KVT}')
    k(f's_cbranch_scc0 {MP}')
    k(f'v_permlane32_swap_b32 v{MX0}, v{MX1}')
    k(f'v_max_f32 v{MX0}, v{MX0}, v{MX1}')
    k(f'v_xor_b32 v{P}, 0x80000000, v{MX0}')
    k(f'v_and_b32 v{P+1}, s60, v{P}')
    k(f'v_sub_f32 v{P}, v{P}, v{P+1}')
    k(f'v_and_b32 v{P+2}, s60, v{P}')
    k(f'v_sub_f32 v{P}, v{P}, v{P+2}')
    k(f'v_lshrrev_b32 v{P+1}, 16, v{P+1}')
    k(f'v_or_b32 v{QF2+1}, v{P+1}, v{P+2}')
    k(f'v_lshrrev_b32 v{QF2+3}, 16, v{P}')
    k(f'v_mov_b32 v{MX1}, v{MX0}')
    k(f'v_permlane32_swap_b32 v{QF2+1}, v{QF2+3}')
    k(f'v_permlane32_swap_b32 v{MX0}, v{MX1}')
    emit(k, a0)
    LOOP = k.newlabel('loop')
    stubs = []
    def site(cond, nmax_list):
        st, back = k.newlabel('stub'), k.newlabel('back')
        k(cond)
        k(f's_cbranch_scc1 {st}')
        k.label(back)
        stubs.append((st, back, nmax_list))
    E = lambda qt, j: f'v_exp_f32 v{S+16*qt+j}, v{S+16*qt+j}'
    C = lambda qt, j: f'v_cvt_pk_bf16_f32 v{P+j}, v{S+16*qt+2*j}, v{S+16*qt+2*j+1}'
    def pv(kb, sub, qt):
        return f'v_mfma_f32_32x32x16_bf16 {v(O+16*qt,16)}, {v(VB+8*kb+4*sub,4)}, {v(P+4*sub,4)}, {v(O+16*qt,16)}'
    LENT = k.newlabel('lent')
    k('s_nop 10')
    k(f's_branch {LENT}')
    k.label(LOOP)
    site('s_cmp_lt_u32 s59, s58', 'top')
    k.label(LENT)
    for u in range(2*NT):
        ktl, qt = u >> 1, u & 1
        if u == 1:
            site('s_cmp_eq_u32 s59, s57', 1)
        if u == 4:
            site('s_cmp_eq_u32 s59, s57', 2)
        nb = (ktl + 1) & 1
        if qt == 0:
            rds = [f'ds_read_b128 {v(KB1+4*nb,4)}, v{AK1} offset:{(ktl+1)*KVT}',
                   f'ds_read_b32 v{KB2+2*nb}, v{AK2} offset:{(ktl+1)*KVT}']
            adds = [f'v_add_u32 v{AK1}, {NT*KVT}, v{AK1}', f'v_add_u32 v{AK2}, {NT*KVT}, v{AK2}']
        else:
            rds = [f'ds_read_b128 {v(VB+8*nb+4*sub,4)}, v{AV} offset:{(ktl+1)*KVT+sub*608}' for sub in range(2)]
            adds = [f'v_add_u32 v{AV}, {NT*KVT}, v{AV}']
        if ktl != NT - 1:
            adds = []
        q = qk(((u + 1) >> 1) & 1, (u + 1) & 1)
        seq = [E(qt,0), rds[0], E(qt,1), rds[1], pv(((u-1) >> 1) & 1, 1, (u-1) & 1), E(qt,2), E(qt,3), E(qt,4), C(qt,0), q[0],
               E(qt,5), E(qt,6), E(qt,7), C(qt,1), C(qt,2), q[1], C(qt,3), E(qt,8), E(qt,9), pv(ktl & 1, 0, qt)] + adds + \
              [E(qt,j) for j in range(10, 16)] + [C(qt,j) for j in range(4, 8)]
        if u == 2*NT - 1:
            seq.insert(len(seq) - 3, 's_add_u32 s59, s59, 1')
            seq.insert(len(seq) - 1, f's_cmp_lt_u32 s59, {32 // NT}')
        emit(k, seq)
    k(f's_cbranch_scc1 {LOOP}')
    k(pv((NT-1) & 1, 1, 1))
    k(f's_mov_b32 s61, {fl(2.0**40)}')
    k(f'v_max_f32 v{P}, v{O+10}, v{O+26}')
    k(f'v_add_f32 v{P+1}, v{O+10}, v{O+26}')
    k(f'v_cmp_nlt_f32 vcc, v{P+1}, s61')
    OKL = k.newlabel('ok')
    k(f's_cbranch_vccz {OKL}')
    k('s_cmp_lg_u32 s57, 0')
    k(f's_cbranch_scc1 {OKL}')
    k(f's_mov_b32 s56, {31*KVT}')
    k('s_mov_b32 s57, 99')
    k('s_mov_b32 s58, 0')
    k(f's_branch {RETRY}')
    k.label(OKL)
    k(f'v_mov_b32 v{O+16+11}, v{MX1}')
    k('s_barrier')
    for j in range(3):
        k(f'ds_write_b128 v5, {v(O+16+4*j,4)} offset:{j*1024}')
    k('s_barrier')
    X = S
    for j in (2, 0, 1):
        k(f'ds_read_b128 {v(X+4*j,4)}, v6 offset:{j*1024}')
    k(f'v_max_f32 v{P}, v{MX0}, v{X+11}')
    k(f'v_sub_f32 v{P+1}, v{MX0}, v{P}')
    k(f'v_sub_f32 v{P+2}, v{X+11}, v{P}')
    k(f'v_exp_f32 v{P+1}, v{P+1}')
    k(f'v_exp_f32 v{P+2}, v{P+2}')
    k(f'v_mul_f32 v{P}, v{P+1}, v{O+10}')
    k(f'v_fmac_f32 v{P}, v{P+2}, v{X+10}')
    k(f'v_rcp_f32 v{P}, v{P}')
    k(f'v_mul_f32 v{P+1}, v{P+1}, v{P}')
    k(f'v_mul_f32 v{P+2}, v{P+2}, v{P}')
    for j in range(10):
        k(f'v_mul_f32 v{O+j}, v{P+1}, v{O+j}')
        k(f'v_fmac_f32 v{O+j}, v{P+2}, v{X+j}')
    for j in range(5):
        k(f'v_cvt_pk_bf16_f32 v{P+4+j if j < 4 else P+3}, v{O+2*j}, v{O+2*j+1}')
    k(f'buffer_store_dwordx4 {v(P+4,4)}, v3, s[24:27], s52 offen')
    k(f'buffer_store_dword v{P+3}, v4, s[24:27], s53 offen')
    k('s_endpgm')
    for st, back, what in stubs:
        k.label(st)
        if what == 'top':
            l2 = k.newlabel('w9')
            k('s_cmp_eq_u32 s59, 1')
            k(f's_cbranch_scc1 {l2}')
            k('s_waitcnt vmcnt(0)')
            k.label(l2)
            k(f's_waitcnt vmcnt({18-9})')
        else:
            k(f's_waitcnt vmcnt({18-what})')
        k('s_barrier').nobarwait = True
        k(f's_branch {back}')
    return k
```

```python
from common import *

K5_GRID = 256
K5_LDS = 36864 + 2048
K9_LDS = 73728

def build_proj(name, final):
    nks = 36 if final else 18
    k = Kern(name)
    prologue(k, K5_GRID, need_inputs=final)
    VL, VC, VG = 1, 2, 3
    lane_ids(k, VL, VC, VG, 3)
    k('s_and_b32 s40, s2, 7')
    k('s_lshl_b32 s40, s40, 3')
    k('s_lshr_b32 s41, s2, 5')
    k('s_add_u32 s40, s40, s41')
    k('s_bfe_u32 s41, s2, 0x20003')
    k('s_mul_i32 s42, s40, 36864')
    k(f's_mul_i32 s43, s41, {nks*9216}')
    k(f's_add_u32 s43, s43, {FBW if final else WOF}')
    k('s_lshl_b32 s44, s3, 11')
    k('s_add_u32 s44, s44, s43')
    k('s_add_u32 s45, s43, 8192')
    k('s_cmp_lt_u32 s3, 2')
    k(f's_cselect_b32 s45, s45, {OOR}')
    k(f'v_lshlrev_b32 v4, 4, v{VL}')
    srd(k, WS, 20, WS_END)
    ACC, AF, XV, B = 16, 36, 60, 72
    k('s_and_b32 s46, s3, 1')
    k('s_mul_i32 s46, s46, 18432')
    k(f'v_add_u32 v5, s46, v4')
    k('s_lshr_b32 s47, s3, 1')
    k('s_mul_i32 s47, s47, 3072')
    k('s_add_u32 s46, s46, s47')
    k('s_add_u32 s47, s46, s42')
    def issue(c):
        img = c // 3
        src = (XR if img == 0 else OR) if final else OR
        k(f's_add_u32 m0, s46, {img*36864 + (c%3)*6144}')
        k(f's_add_u32 s48, s47, {src + (c%3)*6144}')
        for q in range(3):
            k(f'buffer_load_dwordx4 v4, s[24:27], s48 offen offset:{q*1024} lds')
        for ks in range(6*c, 6*c+6):
            for e in range(2):
                k(f'buffer_load_dwordx4 {R(B+(ks*3+e)*4,4)}, v4, s[24:27], s44 offen offset:{e*1024}')
            k(f'buffer_load_dwordx4 {R(B+(ks*3+2)*4,4)}, v4, s[24:27], s45 offen')
            k('s_add_u32 s44, s44, 9216')
            k('s_add_u32 s45, s45, 9216')
    nch = nks // 6
    for c in range(3):
        issue(c)
    if not final:
        k('s_mul_i32 s50, s41, 4608')
        k('s_add_u32 s50, s50, s42')
        k('s_lshl_b32 s51, s3, 10')
        k('s_add_u32 s51, s51, s50')
        k('s_add_u32 s52, s51, 18432')
        k('s_mul_i32 s53, s3, 18432')
        k('s_add_u32 s53, s53, s50')
        k('s_add_u32 s53, s53, 4096')
        k('s_cmp_lt_u32 s3, 2')
        k(f's_cselect_b32 s53, s53, {OOR}')
        k(f'v_lshrrev_b32 v6, 1, v{VG}')
        k('v_lshlrev_b32 v6, 8, v6')
        k(f'v_lshl_add_u32 v6, v{VC}, 4, v6')
        k(f'v_and_b32 v7, 1, v{VG}')
        k('v_lshl_add_u32 v6, v7, 3, v6')
        for tp in range(2):
            k(f'buffer_load_dwordx4 {v(XV+4*tp,4)}, v4, s[24:27], s{51+tp} offen')
        k(f'buffer_load_dwordx2 {v(XV+8,2)}, v6, s[24:27], s53 offen')
        extra = 3
    else:
        extra = 0
        srd(k, 28, 16, 2048*1152)
        k('s_and_b32 s50, s40, 1')
        k('s_lshl_b32 s50, s50, 10')
        k('s_lshr_b32 s51, s40, 1')
        k('s_add_u32 s50, s50, s51')
        k('s_mul_i32 s50, s50, 1152')
        k('s_mul_i32 s51, s41, 288')
        k('s_add_u32 s50, s50, s51')
        k('s_lshl_b32 s51, s3, 6')
        k('s_add_u32 s51, s51, s50')
        k(f's_add_u32 s52, s51, {512*1152}')
        k(f's_mul_i32 s53, s3, {512*1152}')
        k('s_add_u32 s53, s53, s50')
        k('s_add_u32 s53, s53, 256')
        k('s_cmp_lt_u32 s3, 2')
        k(f's_cselect_b32 s53, s53, {OOR}')
        k(f'v_mul_u32_u24 v6, {32*1152}, v{VC}')
        k(f'v_lshl_add_u32 v7, v{VG}, 4, v6')
        k(f'v_lshl_add_u32 v6, v{VG}, 3, v6')
    def rd(ks):
        off = (ks // 18) * 36864 + (ks % 18) * 1024
        b = AF + (ks & 1) * 12
        return [f'ds_read_b128 {v(b,4)}, v4 offset:{off}', f'ds_read_b128 {v(b+4,4)}, v4 offset:{off+18432}',
                f'ds_read_b128 {v(b+8,4)}, v5 offset:{off}']
    def mf(ks):
        out = []
        b = AF + (ks & 1) * 12
        for tp in range(2):
            for e in range(2):
                A = ACC + (tp*2+e)*4
                out.append(f'v_mfma_f32_16x16x32_bf16 {v(A,4)}, {R(B+(ks*3+e)*4,4)}, {v(b+4*tp,4)}, {"0" if ks == 0 else v(A,4)}')
        A = ACC + 16
        out.append(f'v_mfma_f32_16x16x32_bf16 {v(A,4)}, {R(B+(ks*3+2)*4,4)}, {v(b+8,4)}, {"0" if ks == 0 else v(A,4)}')
        return out
    if final:
        k('v_add_u32 v8, 0x9000, v4')
        k('v_add_u32 v9, 0x9000, v5')
        def rd(ks):
            a, b8 = (4, 5) if ks < 18 else (8, 9)
            off = (ks % 18) * 1024
            b = AF + (ks & 1) * 12
            return [f'ds_read_b128 {v(b,4)}, v{a} offset:{off}', f'ds_read_b128 {v(b+4,4)}, v{a} offset:{off+18432}',
                    f'ds_read_b128 {v(b+8,4)}, v{b8} offset:{off}']
    for c in range(nch):
        issued = min(c + 3, nch)
        n_after = 18 + (issued - 1 - c) * 21 + (extra if True else 0)
        k(f's_waitcnt vmcnt({min(n_after, 63)})')
        k('s_barrier')
        if c + 3 < nch:
            issue(c + 3)
        emit(k, rd(6*c))
        for ks in range(6*c, 6*c+6):
            emit(k, inter(mf(ks), rd(ks+1) if ks + 1 < 6*c+6 else []))
    O = 36
    if final:
        for tp in range(2):
            for q in range(4):
                A = ACC + tp*8 + 2*q
                k(f'v_cvt_pk_bf16_f32 v{O+4*tp+q}, v{A}, v{A+1}')
            k(f'buffer_store_dwordx4 {v(O+4*tp,4)}, v7, s[28:31], s{51+tp} offen')
        for q in range(2):
            k(f'v_cvt_pk_bf16_f32 v{O+8+q}, v{ACC+16+2*q}, v{ACC+17+2*q}')
        k(f'buffer_store_dwordx2 {v(O+8,2)}, v6, s[28:31], s53 offen')
        k('s_endpgm')
        return k
    k('s_mov_b32 s54, 0xffff0000')
    for i in range(10):
        A = ACC + 2*i
        k(f'v_lshlrev_b32 v{O+12}, 16, v{XV+i}')
        k(f'v_and_b32 v{O+13}, s54, v{XV+i}')
        k(f'v_add_f32 v{A}, v{A}, v{O+12}')
        k(f'v_add_f32 v{A+1}, v{A+1}, v{O+13}')
        k(f'v_cvt_pk_bf16_f32 v{O+i}, v{A}, v{A+1}')
        if i == 3 or i == 7:
            k(f'buffer_store_dwordx4 {v(O+i-3,4)}, v4, s[24:27], s{51+(i>>2)} offen')
    k(f'buffer_store_dwordx2 {v(O+8,2)}, v6, s[24:27], s53 offen')
    k(f'v_cmp_eq_u32 vcc, 3, v{VG}')
    k('s_cmp_eq_u32 s41, 3')
    k('s_cselect_b64 vcc, vcc, 0')
    k(f'v_cndmask_b32 v{ACC+19}, v{ACC+19}, 0, vcc')
    for tp in range(3):
        n = 8 if tp < 2 else 4
        k(f'v_mul_f32 v{10+tp}, v{ACC+8*tp}, v{ACC+8*tp}')
        for i in range(1, n):
            k(f'v_fmac_f32 v{10+tp}, v{ACC+8*tp+i}, v{ACC+8*tp+i}')
    k('s_bitcmp1_b32 s3, 0')
    k('s_cselect_b64 vcc, -1, 0')
    k('v_cndmask_b32 v13, v12, 0, vcc')
    k('v_cndmask_b32 v12, 0, v12, vcc')
    k('v_add_f32 v10, v10, v13')
    k('v_add_f32 v11, v11, v12')
    k(f'v_lshlrev_b32 v12, 6, v{VC}')
    k(f'v_lshl_add_u32 v12, v{VG}, 2, v12')
    k('s_lshl_b32 s54, s3, 4')
    k('s_add_u32 s54, s54, 36864')
    k('v_add_u32 v12, s54, v12')
    k('ds_write_b32 v12, v10')
    k('ds_write_b32 v12, v11 offset:1024')
    k('s_barrier')
    LE = k.newlabel('end')
    k('s_cmp_lg_u32 s3, 0')
    k(f's_cbranch_scc1 {LE}')
    k(f'v_and_b32 v12, 31, v{VL}')
    k('v_lshlrev_b32 v13, 6, v12')
    for q in range(4):
        k(f'ds_read_b128 {v(ACC+4*q,4)}, v13 offset:{36864+16*q}')
    for st in (8, 4, 2, 1):
        for i in range(st):
            k(f'v_add_f32 v{ACC+i}, v{ACC+i}, v{ACC+st+i}')
    k('v_lshlrev_b32 v12, 4, v12')
    k('s_lshl_b32 s54, s40, 9')
    k('s_lshl_b32 s55, s41, 2')
    k('s_add_u32 s54, s54, s55')
    k(f's_add_u32 s54, s54, {SS}')
    k(f'buffer_store_dword v{ACC}, v12, s[24:27], s54 offen')
    k.label(LE)
    k('s_endpgm')
    return k
```

```python
XR   = 0x0
SS   = 0x240000
WT   = 0x250000
FA   = 0x490000
FBW  = 0x540000
WQT  = 0x690000
GWF  = 0x890000
WOF  = 0xA90000
QI   = 0xB40000
KV   = 0xD80000
OR   = 0x1220000
LO = 0x1460000
WS_END = 0x28C0000
KVT = 2368
KVH = 64 * KVT
import math
C_AMP = math.sqrt(2.0 / 576.0)
QSCALE = (18 ** -0.5) * math.log2(math.e)

def qkv_col(cb, tile, idx):
    g, r = idx >> 2, idx & 3
    if tile < 4:
        which = tile >> 1
        h = 2 * cb + (g >> 1)
        d = 8 * (g & 1) + 4 * (tile & 1) + r
    elif tile == 4:
        if g == 3:
            return None
        which = g
        h = 2 * cb + (r >> 1)
        d = 16 + (r & 1)
    else:
        which = 2
        h = 2 * cb + (tile - 5)
        d = idx
    return which * 576 + h * 18 + d

def cprime_to_c(cp):
    if cp < 512:
        return 18 * (cp >> 4) + (cp & 15)
    return 18 * ((cp - 512) >> 1) + 16 + (cp & 1)

def col9(cb4, tile, rho):
    if tile < 8:
        return 144 * cb4 + 32 * (tile >> 1) + 8 * (rho >> 2) + 4 * (tile & 1) + (rho & 3)
    return 144 * cb4 + 128 + rho

def vpos(d):
    if d == 4: return 18
    if d == 18: return 4
    return d
```

```python
import sys
sys.path.insert(0, 'exp')
from common import *
from gen_k1 import *
from gen_k2 import *
from gen_k3 import *
from gen_k4 import *
from gen_k5 import *
out = sys.argv[1] if len(sys.argv) > 1 else 'full.s'
ks = [build_k1(), build_k2(), build_k3(), build_k4(), build_proj('k5_kernel', False), build_k6(), build_k3('k7_kernel', LO), build_k4('k8_kernel', LO), build_proj('k9_kernel', True)]
launches = [('k1_kernel', K1_GRID, 256, K1_LDS), ('k2_kernel', K2_GRID, 256, K2_LDS), ('k3_kernel', K3_GRID, 256, K3_LDS),
            ('k4_kernel', K4_GRID, 512, K4_LDS), ('k5_kernel', K5_GRID, 256, K5_LDS), ('k6_kernel', K6_GRID, 256, K6_LDS),
            ('k7_kernel', K3_GRID, 256, K3_LDS), ('k8_kernel', K4_GRID, 512, K4_LDS), ('k9_kernel', K5_GRID, 256, K9_LDS)]
emit_file(out, ks, launches)
```

```python
import re, os

TRANS = ('v_exp_f32', 'v_log_f32', 'v_rcp_f32', 'v_rsq_f32', 'v_sqrt_f32', 'v_sin_f32', 'v_cos_f32',
         'v_rcp_iflag_f32', 'v_exp_f16', 'v_rcp_f16')
REG_RE = re.compile(r'^[-|]*([vas])(?:(\d+)|\[(\d+):(\d+)\])\|?$')


def v(n, c=1):
    return f'v{n}' if c == 1 else f'v[{n}:{n + c - 1}]'


def a(n, c=1):
    return f'a{n}' if c == 1 else f'a[{n}:{n + c - 1}]'


def s(n, c=1):
    return f's{n}' if c == 1 else f's[{n}:{n + c - 1}]'


def R(n, c=1):
    if n >= 256:
        return a(n - 256, c)
    assert n + c <= 256
    return v(n, c)


def regs_of(tok):
    tok = tok.strip()
    m = REG_RE.match(tok)
    if m:
        k = m.group(1)
        if m.group(2) is not None:
            return [(k, int(m.group(2)))]
        return [(k, i) for i in range(int(m.group(3)), int(m.group(4)) + 1)]
    if tok in ('vcc', 'vcc_lo', 'vcc_hi'):
        return [('s', 106), ('s', 107)]
    if tok in ('exec', 'exec_lo', 'exec_hi'):
        return [('x', 0)]
    if tok == 'm0':
        return [('m', 0)]
    return []


class I:
    __slots__ = ('text', 'op', 'cls', 'rd', 'wr', 'ops', 'mods', 'target', 'passes', 'D', 'C', 'AB', 'dpp',
                 'kind', 'wide', 'lds', 'nobarwait')

    def __init__(self, text):
        self.text = text
        t = text.split(';')[0].strip()
        sp = t.split(None, 1)
        op = sp[0]
        self.op = op
        rest = sp[1] if len(sp) > 1 else ''
        parts, depth, cur = [], 0, ''
        for ch in rest:
            if ch in '[(':
                depth += 1
            if ch in '])':
                depth -= 1
            if ch == ',' and depth == 0:
                parts.append(cur)
                cur = ''
            else:
                cur += ch
        if cur.strip():
            parts.append(cur)
        mods = ''
        if parts:
            last = parts[-1].strip().split(None, 1)
            parts[-1] = last[0]
            mods = last[1] if len(last) > 1 else ''
        ops = [p.strip() for p in parts]
        self.ops, self.mods = ops, mods
        self.target = None
        self.passes = 0
        self.D = self.C = self.AB = ()
        self.dpp = False
        self.kind = None
        self.wide = ()
        self.lds = False
        self.nobarwait = False
        rd, wr = [], []
        RR = regs_of
        base = re.sub(r'_(e32|e64|dpp|sdwa)$', '', op)
        if op.startswith('v_mfma'):
            self.cls = 'mfma'
            self.passes = 8 if ('32x32x16' in op or '32x32x8' in op) else 4 if '16x16x32' in op else None
            assert self.passes, op
            self.D = tuple(RR(ops[0]))
            self.AB = tuple(RR(ops[1]) + RR(ops[2]))
            self.C = tuple(RR(ops[3]))
            wr += self.D
            rd += list(self.AB) + list(self.C)
        elif op.startswith('v_'):
            self.cls = 'valu'
            self.kind = 'trans' if base in TRANS else 'dot' if base.startswith('v_dot') else 'valu'
            if 'op_sel' in mods or 'dst_sel' in mods:
                self.kind = 'opsel' if self.kind == 'valu' else self.kind
                rd += RR(ops[0])
            if any(k in mods for k in ('quad_perm', 'row_', 'wave_')):
                self.dpp = True
                rd += RR(ops[0])
            if base in ('v_swap_b32', 'v_permlane16_swap_b32', 'v_permlane32_swap_b32'):
                wr += RR(ops[0]) + RR(ops[1])
                rd += RR(ops[0]) + RR(ops[1])
            elif base.startswith('v_cmpx'):
                wr += [('x', 0)] + RR(ops[0])
                for o in ops[1:]:
                    rd += RR(o)
            elif base in ('v_add_co_u32', 'v_sub_co_u32', 'v_addc_co_u32', 'v_subb_co_u32', 'v_subrev_co_u32'):
                wr += RR(ops[0]) + RR(ops[1])
                for o in ops[2:]:
                    rd += RR(o)
            elif base == 'v_nop':
                pass
            else:
                wr += RR(ops[0])
                for o in ops[1:]:
                    rd += RR(o)
                if base in ('v_fmac_f32', 'v_mac_f32', 'v_pk_fmac_f16', 'v_writelane_b32') or base.startswith('v_dot2c'):
                    rd += RR(ops[0])
        elif op.startswith('ds_'):
            self.cls = 'ds'
            if op.startswith(('ds_read', 'ds_bpermute', 'ds_permute', 'ds_swizzle')) or '_rtn' in op:
                wr += RR(ops[0])
                for o in ops[1:]:
                    rd += RR(o)
            else:
                for o in ops:
                    rd += RR(o)
        elif op.startswith(('buffer_', 'global_')):
            self.cls = 'vmem'
            if op in ('buffer_wbl2', 'buffer_inv'):
                pass
            elif 'load' in op:
                if re.search(r'\blds\b', mods) or '_lds_' in op:
                    self.lds = True
                    for o in ops:
                        rd += RR(o)
                    rd += [('m', 0)]
                else:
                    wr += RR(ops[0])
                    for o in ops[1:]:
                        rd += RR(o)
            else:
                for o in ops:
                    rd += RR(o)
                if 'atomic' in op and re.search(r'\bsc0\b', mods):
                    wr += RR(ops[0])
                if 'store' in op and ('x3' in op or 'x4' in op):
                    self.wide = tuple(RR(ops[0] if op.startswith('buffer') else ops[1]))
        elif op.startswith(('s_load', 's_buffer_load', 's_memtime', 's_memrealtime', 's_atomic')):
            self.cls = 'smem'
            wr += RR(ops[0])
            for o in ops[1:]:
                rd += RR(o)
        elif op == 's_waitcnt':
            self.cls = 'wait'
        elif op == 's_nop':
            self.cls = 'nop'
        elif op == 's_barrier':
            self.cls = 'barrier'
        elif op == 's_endpgm':
            self.cls = 'end'
        elif op == 's_branch' or op.startswith('s_cbranch'):
            self.cls = 'branch'
            self.target = ops[0]
        elif op.startswith('s_'):
            self.cls = 'salu'
            if op.startswith(('s_cmp', 's_bitcmp', 's_setprio', 's_sleep', 's_setreg')):
                for o in ops:
                    rd += RR(o)
            else:
                wr += RR(ops[0])
                for o in ops[1:]:
                    rd += RR(o)
                if 'saveexec' in op:
                    wr += [('x', 0)]
                if op.startswith(('s_cmov', 's_cselect')) or op in ('s_addk_i32', 's_mulk_i32'):
                    rd += RR(ops[0])
        else:
            raise ValueError('unknown instruction ' + text)
        self.rd, self.wr = tuple(rd), tuple(wr)


BIG = 1000


class St:
    def __init__(self):
        self.h = {}
        self.vm = {}
        self.lg = {}
        self.sm = set()
        self.dsany = None

    def copy(self):
        n = St()
        n.h = dict(self.h)
        n.vm = dict(self.vm)
        n.lg = dict(self.lg)
        n.sm = set(self.sm)
        n.dsany = self.dsany
        return n

    def merge(self, o):
        ch = False
        for k, val in o.h.items():
            if k not in self.h or val < self.h[k]:
                self.h[k] = val
                ch = True
        for mine, other in ((self.vm, o.vm), (self.lg, o.lg)):
            for k, val in other.items():
                if k not in mine or val < mine[k]:
                    mine[k] = val
                    ch = True
        if not o.sm <= self.sm:
            self.sm |= o.sm
            ch = True
        if o.dsany is not None and (self.dsany is None or o.dsany < self.dsany):
            self.dsany = o.dsany
            ch = True
        return ch

    def advance(self, n):
        self.h = {k: d + n for k, d in self.h.items() if d + n < 24}

    def wait(self, vmc=None, lgc=None):
        if vmc is not None:
            self.vm = {k: x for k, x in self.vm.items() if x < vmc}
        if lgc is not None:
            self.lg = {k: x for k, x in self.lg.items() if x < lgc}
            if self.dsany is not None and self.dsany >= lgc:
                self.dsany = None
            if lgc == 0:
                self.sm = set()


def parse_wait(text):
    vm = re.search(r'vmcnt\((\d+)\)', text)
    lg = re.search(r'lgkmcnt\((\d+)\)', text)
    return (int(vm.group(1)) if vm else None, int(lg.group(1)) if lg else None)


MF_RAW = {4: 8, 8: 12}
MF_COV = {4: 6, 8: 10}
MF_WAR = {4: 3, 8: 7}


def step(ins, st, out):
    c = ins.cls
    if c == 'wait':
        vmc, lgc = parse_wait(ins.text)
        st.wait(vmc, lgc)
        out.append(ins.text)
        st.advance(1)
        return
    if c == 'nop':
        out.append(ins.text)
        st.advance(int(ins.ops[0]) + 1)
        return
    vmc = lgc = None
    touched = set(ins.rd) | set(ins.wr)
    for r in touched:
        if r in st.vm and not (c == 'vmem' and r in ins.wr and r not in ins.rd):
            x = st.vm[r]
            vmc = x if vmc is None else min(vmc, x)
        if r in st.lg and not (c == 'ds' and r in ins.wr and r not in ins.rd):
            x = st.lg[r]
            lgc = x if lgc is None else min(lgc, x)
        if r in st.sm:
            lgc = 0
    if c == 'barrier' and st.dsany is not None and not ins.nobarwait:
        lgc = 0
    if lgc is not None and st.sm:
        lgc = 0
    if vmc is not None and vmc > 62:
        vmc = None
    if lgc is not None and lgc > 14:
        lgc = 14
    if vmc is not None or lgc is not None:
        t = 's_waitcnt'
        if vmc is not None:
            t += f' vmcnt({vmc})'
        if lgc is not None:
            t += f' lgkmcnt({lgc})'
        out.append(t)
        st.wait(vmc, lgc)
        st.advance(1)
    need = 0
    H = st.h

    def req(tag, r, ws):
        nonlocal need
        d = H.get((tag, r))
        if d is not None and ws - d > need:
            need = ws - d

    if c == 'mfma':
        for r in ins.rd:
            req('vw', r, 2)
            req('dot', r, 3)
        for r in ins.AB:
            req('m4', r, 8)
            req('m8', r, 12)
        key = (ins.passes, ins.C[0], len(ins.C)) if ins.C else None
        for r in ins.C:
            for p in (4, 8):
                if (('mx', r, key) in H and p == ins.passes and H[('mx', r, key)] == H.get((f'm{p}', r))):
                    continue
                req(f'm{p}', r, MF_COV[p])
        req('xw', ('x', 0), 4)
    elif c == 'valu':
        for r in touched:
            req('m4', r, 8)
            req('m8', r, 12)
            if ins.kind != 'dot':
                req('dot', r, 3)
        if ins.kind == 'dot':
            for r in ins.rd[:8]:
                pass
            srcs = []
            for o in ins.ops[1:3]:
                srcs += regs_of(o)
            for r in srcs:
                req('dot', r, 3)
        for r in ins.wr:
            req('c4', r, 3)
            req('c8', r, 7)
            req('st', r, 2)
        for r in ins.rd:
            if ins.kind != 'trans':
                req('tr', r, 1)
            req('os', r, 1)
            if r[0] == 's':
                req('sw', r, 4 if ins.op.startswith(('v_readlane', 'v_writelane', 'v_div_fmas')) else 2)
            if ins.dpp or ins.op.startswith('v_permlane'):
                req('vw', r, 2)
            if ins.op.startswith(('v_readlane', 'v_readfirstlane')):
                req('vw', r, 1)
        for r in ins.wr:
            req('os', r, 1)
        if ins.dpp:
            req('xw', ('x', 0), 5)
        if ins.op.startswith(('v_readlane', 'v_readfirstlane', 'v_writelane', 'v_permlane')):
            req('xw', ('x', 0), 4)
    elif c in ('ds', 'vmem'):
        for r in touched:
            req('m4', r, 8)
            req('m8', r, 12)
            req('dot', r, 3)
            if r[0] == 's':
                req('sw', r, 5)
        for r in ins.wr:
            req('st', r, 1)
        if ins.lds:
            req('m0', ('m', 0), 1)
    elif c == 'branch':
        if 'vcc' in ins.op:
            req('sw', ('s', 106), 5)
        if 'exec' in ins.op:
            req('xw', ('x', 0), 5)
    while need > 0:
        n = min(need, 16)
        out.append(f's_nop {n - 1}')
        st.advance(n)
        need -= n
    out.append(ins.text)
    st.advance(1)
    H = st.h
    if c == 'mfma':
        key = (ins.passes, ins.D[0], len(ins.D))
        for r in ins.D:
            H[(f'm{ins.passes}', r)] = 0
            H[('mx', r, key)] = 0
        for r in ins.C:
            H[(f'c{ins.passes}', r)] = 0
    elif c == 'valu':
        for r in ins.wr:
            if r[0] in 'va':
                H[('vw', r)] = 0
                if ins.kind == 'trans':
                    H[('tr', r)] = 0
                elif ins.kind == 'dot':
                    H[('dot', r)] = 0
                elif ins.kind == 'opsel':
                    H[('os', r)] = 0
            elif r[0] == 's':
                H[('sw', r)] = 0
            elif r[0] == 'x':
                H[('xw', r)] = 0
    elif c == 'salu':
        if ('m', 0) in ins.wr:
            H[('m0', ('m', 0))] = 0
    elif c == 'vmem':
        for k in st.vm:
            st.vm[k] += 1
        for r in ins.wr:
            st.vm[r] = 0
        for r in ins.wide:
            H[('st', r)] = 0
    elif c == 'ds':
        for k in st.lg:
            st.lg[k] += 1
        for r in ins.wr:
            st.lg[r] = 0
        st.dsany = 0
    elif c == 'smem':
        for r in ins.wr:
            st.sm.add(r)


class Kern:
    def __init__(self, name):
        self.name = name
        self.items = []
        self.nlab = 0
        self.maxv = 0
        self.maxa = 0
        self.maxs = 0

    def __call__(self, text):
        for line in text.strip().split('\n'):
            line = line.strip()
            if not line or line.startswith(';'):
                continue
            sc = os.environ.get('SC1')
            if sc and line.startswith('buffer_store_dwordx4' if sc[0] == '4' else 'buffer_store') and 's[72:75]' not in line:
                line += sc[1:].replace('_', ' ')
            ins = I(line)
            for k, n in ins.rd + ins.wr:
                if k == 'v':
                    self.maxv = max(self.maxv, n + 1)
                elif k == 'a':
                    self.maxa = max(self.maxa, n + 1)
                elif k == 's' and n < 106:
                    self.maxs = max(self.maxs, n + 1)
            self.items.append(ins)
        return self.items[-1]

    def newlabel(self, hint='L'):
        self.nlab += 1
        return f'{self.name}_{hint}{self.nlab}'

    def label(self, name):
        self.items.append(('L', name))

    def finalize(self):
        blocks, cur, names = [], [], {}
        lab_of = []
        curlab = None

        def close():
            nonlocal cur, curlab
            blocks.append(cur)
            lab_of.append(curlab)
            cur, curlab = [], None

        for it in self.items:
            if isinstance(it, tuple):
                if cur or curlab is not None:
                    close()
                curlab = it[1]
                names[it[1]] = len(blocks)
            else:
                cur.append(it)
                if it.cls in ('branch', 'end'):
                    close()
        if cur or curlab is not None:
            close()
        n = len(blocks)
        succ = []
        for i, b in enumerate(blocks):
            sc = []
            last = b[-1] if b else None
            if last is not None and last.cls == 'end':
                pass
            elif last is not None and last.cls == 'branch':
                sc.append(names[last.target])
                if last.op != 's_branch':
                    sc.append(i + 1)
            else:
                if i + 1 < n:
                    sc.append(i + 1)
            succ.append(sc)
        ins_st = [None] * n
        ins_st[0] = St()
        outs = [None] * n
        work = [0]
        while work:
            i = work.pop(0)
            st = ins_st[i].copy()
            out = []
            for ins in blocks[i]:
                step(ins, st, out)
            outs[i] = out
            for j in succ[i]:
                if ins_st[j] is None:
                    ins_st[j] = st.copy()
                    if j not in work:
                        work.append(j)
                elif ins_st[j].merge(st):
                    if j not in work:
                        work.append(j)
        lines = []
        for i in range(n):
            if lab_of[i]:
                lines.append(lab_of[i] + ':')
            assert outs[i] is not None, f'unreachable block {lab_of[i]} in {self.name}'
            lines += ['  ' + x for x in outs[i]]
        return lines


def emit_file(path, kernels, launches):
    hdr = open('interleave_layers__spectral_gfnet__softmax_full_mha__prompt.s.ref').read().split('; @launch')[0]
    o = hdr
    for (name, grid, block, lds) in launches:
        o += f'; @launch kernel={name} grid=({grid},1,1) block=({block},1,1) lds={lds}\n'
    o += '.amdgcn_target "amdgcn-amd-amdhsa--gfx950"\n.text\n'
    for k in kernels:
        o += f'.globl {k.name}\n.p2align 8\n.type {k.name},@function\n{k.name}:\n'
        o += '\n'.join(k.finalize()) + '\n'
    o += '.section .rodata,"a"\n'
    for k in kernels:
        nv = max(k.maxv, 8)
        acc = (nv + 3) // 4 * 4
        tot = acc + k.maxa if k.maxa else nv
        o += f""".p2align 6
.amdhsa_kernel {k.name}
  .amdhsa_next_free_vgpr {tot}
  .amdhsa_next_free_sgpr {max(k.maxs, 16)}
  .amdhsa_accum_offset {acc}
  .amdhsa_group_segment_fixed_size 0
  .amdhsa_kernarg_size 72
  .amdhsa_user_sgpr_count 2
  .amdhsa_user_sgpr_kernarg_segment_ptr 1
  .amdhsa_system_sgpr_workgroup_id_x 1
.end_amdhsa_kernel
"""
    for k in kernels:
        if getattr(k, 'roles', None):
            o += f'; @roles {k.name} ' + ' '.join(str(x) for x in k.roles) + '\n'
    open(path, 'w').write(o)
    return o
```

```python
import struct
from asmlib import *
from layout import *

def f2u(x):
    return struct.unpack('<I', struct.pack('<f', x))[0]
def fl(x):
    return f'0x{f2u(x):08x}'

WS = 24
def prologue(k, ngrid, need_inputs=True):
    if need_inputs:
        k('s_load_dwordx16 s[4:19], s[0:1], 0')
    k('s_load_dwordx2 s[20:21], s[0:1], 64')
    lab = k.newlabel('go')
    k(f's_cmp_lt_u32 s2, {ngrid}')
    k(f's_cbranch_scc1 {lab}')
    k('s_endpgm')
    k.label(lab)

def srd(k, d, base, nbytes):
    k(f's_mov_b32 s{d}, s{base}')
    k(f's_mov_b32 s{d+1}, s{base+1}')
    k(f's_mov_b32 s{d+2}, {nbytes}')
    k(f's_mov_b32 s{d+3}, 0x00020000')

def lane_ids(k, vl, vc, vg, sw):
    k(f'v_lshrrev_b32 v{vl}, 6, v0')
    k(f'v_and_b32 v{vc}, 15, v0')
    k(f'v_readfirstlane_b32 s{sw}, v{vl}')
    k(f'v_and_b32 v{vl}, 63, v0')
    k(f'v_lshrrev_b32 v{vg}, 4, v{vl}')

def inter(main, *fills):
    out = []
    n = len(main)
    idx = [0] * len(fills)
    for t in range(n):
        out.append(main[t])
        for j, l in enumerate(fills):
            want = (t + 1) * len(l) // n
            while idx[j] < want:
                out.append(l[idx[j]]); idx[j] += 1
    return out
def emit(k, lst):
    for x in lst:
        k(x)
OOR = 0x40000000

import os
INSTR = bool(os.environ.get('INSTR'))
STAMP = 0x8000000
def stamp(k, i):
    if INSTR:
        k(f's_memtime s[{76+2*i}:{77+2*i}]')
        if i == 0:
            k('s_memrealtime s[92:93]')
def stamp_end(k, slot, n, swave=3):
    if not INSTR:
        return
    k('s_waitcnt vmcnt(0)')
    k(f's_memtime s[{76+2*n}:{77+2*n}]')
    k('s_memrealtime s[94:95]')
    k('s_load_dwordx2 s[96:97], s[0:1], 56')
    k('s_mov_b64 exec, -1')
    k('s_lshl_b32 s98, s2, 3')
    k(f's_add_u32 s98, s98, s{swave}')
    k('s_lshl_b32 s98, s98, 6')
    k('s_waitcnt lgkmcnt(0)')
    k('s_lshr_b32 s96, s96, 9')
    k('s_and_b32 s96, s96, 15')
    k('s_lshl_b32 s96, s96, 19')
    k('s_add_u32 s98, s98, s96')
    k(f's_add_u32 s98, s98, {STAMP}')
    k('s_mov_b32 s72, s20')
    k('s_mov_b32 s73, s21')
    k('s_mov_b32 s74, 0x10000000')
    k('s_mov_b32 s75, 0x00020000')
    k('v_mov_b32 v0, 0')
    for i in range(8):
        k(f'v_mov_b32 v1, s{76+2*i if i <= n else 76}')
        k(f'buffer_store_dword v1, v0, s[72:75], s98 offen offset:{4*i}')
    k('v_mov_b32 v1, s92')
    k('buffer_store_dword v1, v0, s[72:75], s98 offen offset:32')
    k('v_mov_b32 v1, s94')
    k('buffer_store_dword v1, v0, s[72:75], s98 offen offset:36')
```

```python
from common import *

N_A, N_B, N_C, N_E, N_F, N_G = 288, 64, 80, 126, 41, 41
K1_GRID = N_A + N_B + N_C + N_E + N_F + N_G
K1_LDS = 36864
INV576 = 1.0 / 576.0

def reduce_angle(k, vdst, vm, vt, s576):
    k(f'v_cvt_f32_u32 v{vdst}, v{vm}')
    k(f'v_mul_f32 v{vt}, {fl(INV576)}, v{vdst}')
    k(f'v_floor_f32 v{vt}, v{vt}')
    k(f'v_fma_f32 v{vdst}, v{vt}, s{s576}, v{vdst}')

def build_k1():
    k = Kern('k1_kernel')
    k.roles = [N_A, N_A+N_B, N_A+N_B+N_C, N_A+N_B+N_C+N_E, N_A+N_B+N_C+N_E+N_F]
    prologue(k, K1_GRID)
    stamp(k, 0); stamp(k, 1); stamp(k, 2)
    VL, VC, VG = 1, 2, 3
    SW = 3
    lane_ids(k, VL, VC, VG, SW)
    k('s_mov_b32 s40, 0xc4100000')
    k(f's_mov_b32 s41, {fl(INV576)}')
    LB, LC, LE, LF, LG = [k.newlabel(x) for x in 'BCEFG']
    k(f's_cmp_ge_u32 s2, {N_A}')
    k(f's_cbranch_scc1 {LB}')
    k('s_and_b32 s42, s2, 7')
    k('s_lshl_b32 s42, s42, 1')
    k('s_bfe_u32 s43, s2, 0x10003')
    k('s_add_u32 s42, s42, s43')
    k('s_lshr_b32 s43, s2, 4')
    k('s_and_b32 s44, s3, 1')
    k('s_lshl_b32 s44, s44, 10')
    k('s_lshl_b32 s45, s42, 1')
    k('s_add_u32 s44, s44, s45')
    k('s_lshr_b32 s45, s3, 1')
    k('s_add_u32 s44, s44, s45')
    k('s_mul_i32 s44, s44, 1152')
    k(f's_add_u32 s45, s44, {512*1152}')
    k(f'v_mul_u32_u24 v4, {32*1152}, v{VC}')
    k(f'v_lshl_add_u32 v4, v{VG}, 4, v4')
    srd(k, 28, 4, 2048*1152)
    srd(k, WS, 20, WS_END)
    XB = 48
    for ks in range(18):
        for tt in range(2):
            k(f'buffer_load_dwordx4 {v(XB + (ks*2+tt)*4, 4)}, v4, s[28:31], s{44+tt} offen offset:{ks*64}')
    stamp(k, 1)
    k(f'v_lshrrev_b32 v5, 2, v{VC}')
    k(f'v_and_b32 v6, 3, v{VC}')
    k('v_lshl_add_u32 v5, v5, 3, v6')
    k('s_and_b32 s46, s3, 1')
    k('s_lshl_b32 s46, s46, 2')
    k('s_lshl_b32 s47, s43, 5')
    k('s_add_u32 s46, s46, s47')
    k('v_add_u32 v5, s46, v5')
    k('v_lshrrev_b32 v6, 1, v5')
    k('v_add_u32 v6, 1, v6')
    k('v_and_b32 v7, 1, v5')
    k('v_cvt_f32_u32 v7, v7')
    k('v_mul_f32 v7, 0x3e800000, v7')
    k('v_cmp_eq_u32 vcc, 0x23f, v5')
    k('v_cndmask_b32 v6, v6, 0, vcc')
    k('v_cndmask_b32 v7, v7, 0, vcc')
    k('v_cvt_f32_u32 v8, v6')
    k('v_mul_f32 v8, s41, v8')
    k('s_lshr_b32 s46, s3, 1')
    k('s_lshl_b32 s47, s46, 5')
    k(f'v_lshlrev_b32 v9, 3, v{VG}')
    k('v_add_u32 v9, s47, v9')
    k('v_mul_u32_u24 v9, v9, v6')
    k('v_lshlrev_b32 v10, 6, v6')
    k('s_lshl_b32 s47, s3, 10')
    k(f'v_lshlrev_b32 v11, 4, v{VL}')
    k('v_add_u32 v12, s47, v11')
    k('s_mul_i32 s48, s43, 36864')
    k(f's_add_u32 s48, s48, {FA}')
    k('s_add_u32 s48, s48, s47')
    k('s_cmp_eq_u32 s42, 0')
    k('s_cselect_b32 s48, s48, 0x40000000')
    for m in range(9):
        T = 16 + (m & 1) * 12
        reduce_angle(k, T, 9, 13, 40)
        k(f'v_fma_f32 v{T}, v{T}, s41, v7')
        if m < 8:
            k('v_add_u32 v9, v9, v10')
        for i in range(1, 8):
            k(f'v_add_f32 v{T+i}, v{T+i-1}, v8')
        for i in range(8):
            k(f'v_cos_f32 v{T+i}, v{T+i}')
        for i in range(4):
            k(f'v_cvt_pk_bf16_f32 v{T+8+i}, v{T+2*i}, v{T+2*i+1}')
        k(f'ds_write_b128 v12, {v(T+8,4)} offset:{m*4096}')
        k(f'buffer_store_dwordx4 {v(T+8,4)}, v11, s[24:27], s48 offen')
        if m < 8:
            k('s_add_u32 s48, s48, 4096')
    k('s_barrier')
    stamp(k, 2)
    ACC = 192
    FRG = 16
    def rd(ks):
        for tile in range(2):
            k(f'ds_read_b128 {v(FRG + (ks%3)*8 + tile*4, 4)}, v11 offset:{(ks*2+tile)*1024}')
    rd(0); rd(1)
    for ks in range(18):
        if ks + 2 < 18:
            rd(ks + 2)
        for tt in range(2):
            for tile in range(2):
                A = ACC + (tile*2+tt)*4
                Cop = '0' if ks == 0 else v(A, 4)
                k(f'v_mfma_f32_16x16x32_bf16 {v(A,4)}, {v(FRG + (ks%3)*8 + tile*4, 4)}, {v(XB + (ks*2+tt)*4, 4)}, {Cop}')
    k(f's_mov_b32 s46, {fl(C_AMP)}')
    k('s_cmp_eq_u32 s43, 17')
    k(f's_cselect_b32 s47, {fl(1.0/24)}, s46')
    k('v_mov_b32 v5, s46')
    k('v_mov_b32 v6, s47')
    k(f'v_cmp_eq_u32 vcc, 3, v{VG}')
    k('v_cndmask_b32 v5, v5, v6, vcc')
    k('s_lshl_b32 s47, s42, 3')
    k('s_lshl_b32 s48, s3, 1')
    k('s_add_u32 s47, s47, s48')
    k('s_mul_i32 s47, s47, 18432')
    k('s_lshl_b32 s48, s43, 10')
    k('s_add_u32 s47, s47, s48')
    k('s_add_u32 s48, s47, 18432')
    for tt in range(2):
        for tile in range(2):
            A = ACC + (tile*2+tt)*4
            for r in range(4):
                if tile == 1 and r >= 2:
                    k(f'v_mul_f32 v{A+r}, v5, v{A+r}')
                else:
                    k(f'v_mul_f32 v{A+r}, s46, v{A+r}')
            for h in range(2):
                k(f'v_cvt_pk_bf16_f32 v{16+tt*4+tile*2+h}, v{A+2*h}, v{A+2*h+1}')
        k(f'buffer_store_dwordx4 {v(16+tt*4,4)}, v11, s[24:27], s{47+tt} offen')
    stamp_end(k, 0, 3)
    k('s_endpgm')
    k.label(LB)
    k(f's_cmp_ge_u32 s2, {N_A+N_B}')
    k(f's_cbranch_scc1 {LC}')
    k(f's_sub_u32 s42, s2, {N_A}')
    k('s_lshl_b32 s42, s42, 5')
    k('s_lshl_b32 s43, s3, 3')
    k('s_add_u32 s42, s42, s43')
    k(f'v_lshrrev_b32 v4, 3, v{VL}')
    k('v_add_u32 v4, s42, v4')
    k('v_and_b32 v5, 63, v4')
    k('v_lshrrev_b32 v6, 6, v4')
    k('v_lshl_add_u32 v5, v5, 5, v6')
    k('v_mul_u32_u24 v5, 1152, v5')
    k(f'v_and_b32 v6, 7, v{VL}')
    k('v_lshl_add_u32 v5, v6, 4, v5')
    srd(k, 28, 4, 2048*1152)
    srd(k, WS, 20, WS_END)
    for m in range(9):
        k(f'buffer_load_dwordx4 {v(16+4*m,4)}, v5, s[28:31], 0 offen offset:{128*m}')
    U = 64
    k('s_mov_b32 s44, 0xffff0000')
    for i in range(36):
        k(f'v_lshlrev_b32 v{U+2*i}, 16, v{16+i}')
        k(f'v_and_b32 v{U+2*i+1}, s44, v{16+i}')
    for q in range(4):
        k(f'v_add_f32 v{8+q}, v{U+q}, v{U+4+q}')
    for i in range(8, 72):
        k(f'v_add_f32 v{8+(i&3)}, v{8+(i&3)}, v{U+i}')
    def red8(r):
        k(f'v_add_f32 v{r}, v{r}, v{r+1}')
        k(f'v_add_f32 v{r+2}, v{r+2}, v{r+3}')
        k(f'v_add_f32 v{r}, v{r}, v{r+2}')
        k(f'v_add_f32_dpp v{r}, v{r}, v{r} quad_perm:[1,0,3,2] row_mask:0xf bank_mask:0xf')
        k(f'v_add_f32_dpp v{r}, v{r}, v{r} quad_perm:[2,3,0,1] row_mask:0xf bank_mask:0xf')
        k(f'v_add_f32_dpp v{r}, v{r}, v{r} row_half_mirror row_mask:0xf bank_mask:0xf')
    red8(8)
    k('v_mul_f32 v12, s41, v8')
    for i in range(72):
        k(f'v_sub_f32 v{U+i}, v{U+i}, v12')
    for q in range(4):
        k(f'v_mul_f32 v{8+q}, v{U+q}, v{U+q}')
    for i in range(4, 72):
        k(f'v_fmac_f32 v{8+(i&3)}, v{U+i}, v{U+i}')
    red8(8)
    k('v_mov_b32 v9, 0')
    k('v_mov_b32 v10, 0')
    k('v_mov_b32 v11, 0')
    k('v_lshlrev_b32 v4, 4, v4')
    k('v_cmp_eq_u32 vcc, 0, v6')
    k('s_and_saveexec_b64 s[46:47], vcc')
    k(f's_mov_b32 s44, {SS}')
    k('buffer_store_dwordx4 v[8:11], v4, s[24:27], s44 offen')
    stamp_end(k, 0, 3)
    k('s_endpgm')
    k.label(LC)
    k(f's_cmp_ge_u32 s2, {N_A+N_B+N_C}')
    k(f's_cbranch_scc1 {LE}')
    k(f's_sub_u32 s42, s2, {N_A+N_B}')
    k('s_lshl_b32 s42, s42, 2')
    k('s_add_u32 s42, s42, s3')
    k('s_lshr_b32 s43, s42, 6')
    k('s_and_b32 s42, s42, 63')
    k('s_lshl_b32 s43, s43, 6')
    k(f'v_add_u32 v4, s43, v{VL}')
    k('v_lshlrev_b32 v5, 1, v4')
    k('v_add_u32 v5, 2, v5')
    k('s_mul_i32 s44, s42, 578')
    srd(k, 28, 6, 2048*578)
    srd(k, 32, 8, 2048*578)
    srd(k, WS, 20, WS_END)
    k('v_lshlrev_b32 v6, 13, v4')
    k('v_cmp_gt_u32 vcc, 0x120, v4')
    k('s_and_saveexec_b64 s[46:47], vcc')
    for f2 in range(32):
        k(f'buffer_load_ushort v{16+f2}, v5, s[28:31], s44 offen')
        k(f'buffer_load_ushort v{48+f2}, v5, s[32:35], s44 offen')
        if f2 < 31:
            k(f's_add_u32 s44, s44, {64*578}')
    k('s_lshl_b32 s45, s42, 7')
    k(f's_add_u32 s45, s45, {WT}')
    for q in range(8):
        for e in range(4):
            k(f'v_lshl_or_b32 v{16+4*q+e}, v{48+4*q+e}, 16, v{16+4*q+e}')
        k(f'buffer_store_dwordx4 {v(16+4*q,4)}, v6, s[24:27], s45 offen offset:{16*q}')
    stamp_end(k, 0, 3)
    k('s_endpgm')
    k.label(LE)
    k(f's_cmp_ge_u32 s2, {N_A+N_B+N_C+N_E}')
    k(f's_cbranch_scc1 {LF}')
    k(f's_sub_u32 s42, s2, {N_A+N_B+N_C}')
    k('s_lshl_b32 s42, s42, 2')
    k('s_add_u32 s42, s42, s3')
    k('s_lshl_b32 s42, s42, 2')
    srd(k, 28, 12, 576*3456)
    srd(k, WS, 20, WS_END)
    k(f'v_lshrrev_b32 v4, 2, v{VC}')
    k(f'v_and_b32 v5, 3, v{VC}')
    k('v_lshrrev_b32 v6, 1, v4')
    k('v_mul_u32_u24 v6, 18, v6')
    k('v_and_b32 v7, 1, v4')
    k('v_lshl_add_u32 v6, v7, 3, v6')
    k('v_add_u32 v6, v6, v5')
    k('v_mul_u32_u24 v7, 0x240, v4')
    k('v_lshrrev_b32 v8, 1, v5')
    k('v_mul_u32_u24 v8, 18, v8')
    k('v_add_u32 v7, v7, v8')
    k('v_and_b32 v8, 1, v5')
    k('v_add3_u32 v7, v7, v8, 16')
    k('v_mov_b32 v8, 0x10000000')
    k('v_cmp_eq_u32 vcc, 3, v4')
    k('v_cndmask_b32 v7, v7, v8, vcc')
    k(f'v_mul_u32_u24 v9, {8*3456}, v{VG}')
    k(f'v_lshlrev_b32 v11, 4, v{VL}')
    for i in range(4):
        k(f's_add_u32 s43, s42, {i}')
        k('s_mul_i32 s44, s43, 3641')
        k('s_lshr_b32 s44, s44, 16')
        k('s_mul_i32 s45, s44, 18')
        k('s_sub_u32 s45, s43, s45')
        k('s_mul_i32 s46, s44, 9363')
        k('s_lshr_b32 s46, s46, 16')
        k('s_mul_i32 s47, s46, 7')
        k('s_sub_u32 s47, s44, s47')
        k('s_lshr_b32 s48, s47, 1')
        k('s_mul_i32 s48, s48, 576')
        k('s_and_b32 s49, s47, 1')
        k('s_lshl_b32 s49, s49, 2')
        k('s_add_u32 s48, s48, s49')
        k('s_mul_i32 s49, s47, 18')
        k(f's_add_u32 s49, s49, {1152-90}')
        k('s_cmp_lt_u32 s47, 4')
        k('s_cselect_b32 s48, s48, s49')
        k('s_cselect_b64 s[50:51], -1, 0')
        k('s_cmp_eq_u32 s47, 4')
        k('s_cselect_b32 s48, 0, s48')
        k('s_cselect_b64 s[52:53], -1, 0')
        k('s_mul_i32 s49, s46, 36')
        k('s_add_u32 s48, s48, s49')
        k(f'v_cndmask_b32 v10, v{VC}, v6, s[50:51]')
        k('v_cndmask_b32 v10, v10, v7, s[52:53]')
        k('v_add_u32 v10, s48, v10')
        k('v_lshl_add_u32 v10, v10, 1, v9')
        k(f's_mul_i32 s49, s45, {32*3456}')
        D = 16 + 4*i
        for e in range(8):
            k(f'buffer_load_ushort v{D+e//2+(e&1)*16}, v10, s[28:31], s49 offen')
            if e < 7:
                k('s_add_u32 s49, s49, 3456')
        k('s_mul_i32 s49, s46, 18')
        k('s_add_u32 s49, s49, s45')
        k('s_mul_i32 s49, s49, 7')
        k('s_add_u32 s49, s49, s47')
        k('s_lshl_b32 s49, s49, 10')
        k(f's_add_u32 s{56+i}, s49, {WQT}')
    for i in range(4):
        for e in range(4):
            k(f'v_lshl_or_b32 v{16+4*i+e}, v{32+4*i+e}, 16, v{16+4*i+e}')
        k(f'buffer_store_dwordx4 {v(16+4*i,4)}, v11, s[24:27], s{56+i} offen')
    stamp_end(k, 0, 3)
    k('s_endpgm')
    def decode9(k):
        k('s_mul_i32 s44, s43, 3641')
        k('s_lshr_b32 s44, s44, 16')
        k('s_mul_i32 s45, s44, 18')
        k('s_sub_u32 s45, s43, s45')
        k('s_mul_i32 s46, s44, 7282')
        k('s_lshr_b32 s46, s46, 16')
        k('s_mul_i32 s47, s46, 9')
        k('s_sub_u32 s47, s44, s47')
        k('s_lshr_b32 s48, s47, 1')
        k('s_lshl_b32 s48, s48, 5')
        k('s_and_b32 s49, s47, 1')
        k('s_lshl_b32 s49, s49, 2')
        k('s_add_u32 s48, s48, s49')
        k('s_mul_i32 s49, s46, 144')
        k('s_add_u32 s48, s48, s49')
        k('s_cmp_eq_u32 s47, 8')
        k('s_cselect_b64 s[50:51], -1, 0')
        k(f'v_cndmask_b32 v10, v6, v{VC}, s[50:51]')
        k('v_add_u32 v10, s48, v10')
    def dest9(k, sd, ksoff):
        k('s_mul_i32 s49, s46, 36')
        k('s_add_u32 s49, s49, s45')
        k('s_mul_i32 s49, s49, 9')
        k('s_add_u32 s49, s49, s47')
        k('s_lshl_b32 s49, s49, 10')
        k(f's_add_u32 s{sd}, s49, {FBW + ksoff*9*1024}')
        k('s_cmp_lt_u32 s43, 648')
        k(f's_cselect_b32 s{sd}, s{sd}, 0x40000000')
    def common9(k, first):
        k(f's_sub_u32 s42, s2, {first}')
        k('s_lshl_b32 s42, s42, 2')
        k('s_add_u32 s42, s42, s3')
        k('s_lshl_b32 s42, s42, 2')
        srd(k, WS, 20, WS_END)
        k(f'v_lshrrev_b32 v4, 2, v{VC}')
        k(f'v_and_b32 v5, 3, v{VC}')
        k('v_lshl_add_u32 v6, v4, 3, v5')
        k(f'v_lshlrev_b32 v11, 4, v{VL}')
    k.label(LF)
    k(f's_cmp_ge_u32 s2, {N_A+N_B+N_C+N_E+N_F}')
    k(f's_cbranch_scc1 {LG}')
    common9(k, N_A+N_B+N_C+N_E)
    k(f's_mov_b32 s60, {fl(C_AMP)}')
    k(f's_mov_b32 s61, {fl(-C_AMP)}')
    k(f'v_mov_b32 v30, {fl(1.0/24)}')
    for i in range(4):
        k(f's_add_u32 s43, s42, {i}')
        decode9(k)
        dest9(k, 56, 0)
        k('s_lshl_b32 s48, s45, 4')
        k('s_add_u32 s48, s48, 1')
        k(f'v_lshl_add_u32 v12, v{VG}, 2, s48')
        k('v_mul_u32_u24 v13, v12, v10')
        k('v_cmp_eq_u32 vcc, 0x11d, v12')
        k('v_mov_b32 v31, s60')
        k('v_mov_b32 v32, s61')
        k('v_cndmask_b32 v31, v31, v30, vcc')
        k('v_cndmask_b32 v32, v32, 0, vcc')
        k('v_cndmask_b32 v33, 0, v30, vcc')
        for e in range(4):
            reduce_angle(k, 16+e, 13, 14, 40)
            k(f'v_mul_f32 v{16+e}, s41, v{16+e}')
            if e < 3:
                k('v_add_u32 v13, v13, v10')
        for e in range(4):
            k(f'v_sin_f32 v{20+e}, v{16+e}')
            k(f'v_cos_f32 v{16+e}, v{16+e}')
        for e in range(3):
            k(f'v_mul_f32 v{16+e}, s60, v{16+e}')
            k(f'v_mul_f32 v{20+e}, s61, v{20+e}')
        k('v_mul_f32 v19, v31, v19')
        k('v_fma_f32 v23, v32, v23, v33')
        for e in range(4):
            k(f'v_cvt_pk_bf16_f32 v{24+e}, v{16+e}, v{20+e}')
        k('buffer_store_dwordx4 v[24:27], v11, s[24:27], s56 offen')
    stamp_end(k, 0, 3)
    k('s_endpgm')
    k.label(LG)
    common9(k, N_A+N_B+N_C+N_E+N_F)
    srd(k, 28, 14, 576*1152)
    for i in range(4):
        k(f's_add_u32 s43, s42, {i}')
        decode9(k)
        dest9(k, 56+i, 18)
        k('s_lshl_b32 s48, s45, 5')
        k(f'v_lshl_add_u32 v12, v{VG}, 3, s48')
        k('v_lshrrev_b32 v13, 4, v12')
        k('v_mul_u32_u24 v13, 18, v13')
        k('v_and_b32 v14, 15, v12')
        k('v_add_u32 v13, v13, v14')
        k('v_subrev_u32 v14, 0x200, v12')
        k('v_mul_u32_u24 v14, 9, v14')
        k('v_add_u32 v14, 16, v14')
        k('s_movk_i32 s54, 1152')
        k('s_cmp_lt_u32 s45, 16')
        k('s_cselect_b64 s[50:51], -1, 0')
        k('s_cselect_b32 s52, s54, {}'.format(17*1152))
        k('v_cndmask_b32 v13, v14, v13, s[50:51]')
        k('v_mul_u32_u24 v13, 1152, v13')
        k('v_lshl_add_u32 v13, v10, 1, v13')
        k('s_mov_b32 s53, 0')
        D = 16 + 4*i
        for e in range(8):
            k(f'buffer_load_ushort v{D+e//2+(e&1)*16}, v13, s[28:31], s53 offen')
            if e < 7:
                k(f's_add_u32 s53, s53, {"1152" if e % 2 == 0 else "s52"}')
    for i in range(4):
        for e in range(4):
            k(f'v_lshl_or_b32 v{16+4*i+e}, v{32+4*i+e}, 16, v{16+4*i+e}')
        k(f'buffer_store_dwordx4 {v(16+4*i,4)}, v11, s[24:27], s{56+i} offen')
    stamp_end(k, 0, 3)
    k('s_endpgm')
    return k
```

```python
from common import *

N_FFT = 288
N_GEMM = 171
K2_GRID = N_FFT + N_GEMM
K2_LDS = 73728
K6_GRID = N_FFT
K6_LDS = 2 * 8704
RS = 272

def fft_role(k, lo=0):
    VL, VC, VG = 1, 2, 3
    k('s_lshr_b32 s42, s2, 5')
    k('s_lshl_b32 s42, s42, 3')
    k('s_and_b32 s43, s2, 7')
    k('s_add_u32 s42, s42, s43')
    k('s_bfe_u32 s43, s2, 0x20003')
    k('s_lshl_b32 s44, s42, 8')
    k('s_lshl_b32 s45, s43, 2')
    k('s_add_u32 s44, s44, s45')
    k('s_mul_i32 s45, s3, 18432')
    k('s_add_u32 s44, s44, s45')
    if lo: k(f's_add_u32 s44, s44, {lo}')
    k('s_lshl_b32 s42, s42, 2')
    k('s_add_u32 s42, s42, s43')
    k('s_lshl_b32 s52, s3, 8')
    k(f's_add_u32 s52, s52, {SS+lo}')
    k('s_add_u32 s53, s52, 16384')
    k(f'v_lshlrev_b32 v4, 4, v{VC}')
    k(f'v_lshl_add_u32 v5, v{VG}, 12, v4')
    k(f'v_mul_u32_u24 v6, {16*18432}, v{VG}')
    k('v_add_u32 v4, v4, v6')
    srd(k, WS, 20, WS_END)
    stamp(k, 1)
    XV, SSV, WV, CA, TC, TS, CB, TMP, ACC = 16, 24, 56, 64, 96, 104, 112, 136, 152
    for i in range(1, 8):
        a_, r = i >> 2, i & 3
        k(f's_add_u32 s{44+i}, s44, {(16*a_+r)*73728}')
    for i in range(8):
        a_, r = i >> 2, i & 3
        k(f'buffer_load_dwordx4 {v(SSV+4*i,4)}, v5, s[24:27], s{52+a_} offen offset:{r*1024}')
        k(f'buffer_load_dword v{XV+i}, v4, s[24:27], s{44+i} offen')
    k('s_lshl_b32 s54, s42, 13')
    k('s_lshl_b32 s55, s3, 11')
    k('s_add_u32 s54, s54, s55')
    k(f's_add_u32 s54, s54, {WT}')
    k(f'v_lshlrev_b32 v6, 7, v{VC}')
    k(f'v_lshl_add_u32 v6, v{VG}, 4, v6')
    for a_ in range(2):
        k(f'buffer_load_dwordx4 {v(WV+4*a_,4)}, v6, s[24:27], s54 offen offset:{a_*64}')
    stamp(k, 2)
    k('s_cmp_eq_u32 s42, 287')
    k('s_cselect_b32 s55, 0, 1.0')
    k('s_lshl_b32 s56, s3, 4')
    k(f'v_add_u32 v9, s56, v{VC}')
    k(f'v_mul_u32_u24 v7, {4*RS}, v{VG}')
    k('v_lshl_add_u32 v7, v9, 2, v7')
    k(f'v_mul_u32_u24 v8, {RS}, v{VC}')
    k(f'v_lshl_add_u32 v8, v{VG}, 4, v8')
    k('v_cvt_f32_u32 v9, v9')
    k(f'v_lshlrev_b32 v10, 2, v{VG}')
    k('v_cvt_f32_u32 v10, v10')
    k(f'v_mul_f32 v11, {fl(1/64)}, v9')
    k('v_mul_f32 v12, v11, v10')
    for ks in range(4):
        for e in range(4):
            n = 16*ks + e
            if n == 0:
                k(f'v_mov_b32 v{TMP}, v12')
            else:
                k(f'v_fmamk_f32 v{TMP+e}, v11, {fl(float(n))}, v12')
        for e in range(4):
            k(f'v_sin_f32 v{TMP+4+e}, v{TMP+e}')
            k(f'v_cos_f32 v{TMP+e}, v{TMP+e}')
        for e in range(4):
            k(f'v_cvt_pk_bf16_f32 v{CA+ks*8+e}, v{TMP+e}, v{TMP+4+e}')
            k(f'v_cvt_pk_bf16_f32 v{CA+ks*8+4+e}, -v{TMP+4+e}, v{TMP+e}')
    k(f'v_mul_f32 v11, {fl(1/2048)}, v9')
    k('v_mul_f32 v12, v11, v10')
    for i in range(8):
        n = 16*(i >> 2) + (i & 3)
        if n == 0:
            k(f'v_mov_b32 v{TC}, v12')
        else:
            k(f'v_fmamk_f32 v{TC+i}, v11, {fl(float(n))}, v12')
    for i in range(8):
        k(f'v_sin_f32 v{TS+i}, v{TC+i}')
        k(f'v_cos_f32 v{TC+i}, v{TC+i}')
    k(f'v_cvt_f32_u32 v9, v{VC}')
    k(f'v_mul_f32 v11, {fl(1/32)}, v9')
    k('v_mul_f32 v12, v11, v10')
    for i in range(8):
        n = 16*(i >> 2) + (i & 3)
        if n == 0:
            k(f'v_mov_b32 v{TMP}, v12')
        else:
            k(f'v_fmamk_f32 v{TMP+i}, v11, {fl(float(n))}, v12')
    for i in range(8):
        k(f'v_sin_f32 v{TMP+8+i}, v{TMP+i}')
        k(f'v_cos_f32 v{TMP+i}, v{TMP+i}')
    C = [CB, CB+12]; S_ = [CB+4, CB+16]; NS = [CB+8, CB+20]
    for q in range(4):
        k(f'v_cvt_pk_bf16_f32 v{C[0]+q}, v{TMP+2*q}, v{TMP+2*q+1}')
        k(f'v_cvt_pk_bf16_f32 v{C[1]+q}, v{TMP+2*q}, -v{TMP+2*q+1}')
        k(f'v_cvt_pk_bf16_f32 v{S_[0]+q}, v{TMP+8+2*q}, v{TMP+9+2*q}')
        k(f'v_cvt_pk_bf16_f32 v{S_[1]+q}, v{TMP+8+2*q}, -v{TMP+9+2*q}')
        k(f'v_cvt_pk_bf16_f32 v{NS[0]+q}, -v{TMP+8+2*q}, -v{TMP+9+2*q}')
        k(f'v_cvt_pk_bf16_f32 v{NS[1]+q}, -v{TMP+8+2*q}, v{TMP+9+2*q}')
    stamp(k, 3)
    k(f's_mov_b32 s56, {fl(4194304.0/576)}')
    k(f'v_mov_b32 v13, {fl(1e-5*4194304.0)}')
    k('s_mov_b32 s57, 0xffff0000')
    XU = 168
    for i in range(8):
        b = SSV + 4*i
        k(f'v_add_f32 v{b}, v{b}, v{b+1}')
        k(f'v_add_f32 v{b+2}, v{b+2}, v{b+3}')
        k(f'v_add_f32 v{b}, v{b}, v{b+2}')
        k(f'v_fma_f32 v{b}, v{b}, s56, v13')
        k(f'v_rsq_f32 v{b}, v{b}')
        k(f'v_lshlrev_b32 v{XU+i}, 16, v{XV+i}')
        k(f'v_and_b32 v{XU+8+i}, s57, v{XV+i}')
        k(f'v_mul_f32 v{b+1}, s55, v{b}')
        k(f'v_mul_f32 v{b+2}, v{b}, v{XU+i}')
        k(f'v_mul_f32 v{b+3}, v{b+1}, v{XU+8+i}')
        k(f'v_cvt_pk_bf16_f32 v{b}, v{b+2}, v{b+3}')
        k(f'ds_write_b32 v7, v{b} offset:{(16*(i>>2)+(i&3))*RS}')
    k('s_barrier')
    stamp(k, 4)
    AF = 24
    YR, YI = ACC, ACC + 8
    def stageA(base):
        for ks in range(4):
            for a_ in range(2):
                k(f'ds_read_b128 {v(AF+(ks*2+a_)*4,4)}, v8 offset:{base + a_*16*RS + ks*64}')
        for ks in range(4):
            for a_ in range(2):
                for c_, Y in ((0, YR), (1, YI)):
                    Cop = '0' if ks == 0 else v(Y+4*a_, 4)
                    k(f'v_mfma_f32_16x16x32_bf16 {v(Y+4*a_,4)}, {v(AF+(ks*2+a_)*4,4)}, {v(CA+ks*8+4*c_,4)}, {Cop}')
    stageA(0)
    WR_, WI_ = 184, 192
    for i in range(8):
        k(f'v_lshlrev_b32 v{WR_+i}, 16, v{WV+i}')
        k(f'v_and_b32 v{WI_+i}, s57, v{WV+i}')
    PR, PI = TMP, TMP + 4
    T0 = TMP + 8
    def cmul(cr, ci, sgn, pack):
        for h in range(4):
            for e in range(2):
                i = 2*h + e
                k(f'v_mul_f32 v{T0+e}, v{YI+i}, v{ci+i}')
                k(f'v_mul_f32 v{T0+2+e}, v{YR+i}, v{ci+i}')
                n1 = '-' if sgn > 0 else ''
                n2 = '' if sgn > 0 else '-'
                k(f'v_fma_f32 v{YR+i}, v{YR+i}, v{cr+i}, {n1}v{T0+e}')
                k(f'v_fma_f32 v{YI+i}, v{YI+i}, v{cr+i}, {n2}v{T0+2+e}')
            pack(h)
    def packB(h):
        k(f'v_cvt_pk_bf16_f32 v{PR+h}, v{YR+2*h}, v{YR+2*h+1}')
        k(f'v_cvt_pk_bf16_f32 v{PI+h}, v{YI+2*h}, v{YI+2*h+1}')
    def stageB(Sa, Sb):
        for a_ in range(2):
            k(f'v_mfma_f32_16x16x32_bf16 {v(YR+4*a_,4)}, {v(C[a_],4)}, {v(PR,4)}, 0')
            k(f'v_mfma_f32_16x16x32_bf16 {v(YI+4*a_,4)}, {v(C[a_],4)}, {v(PI,4)}, 0')
        for a_ in range(2):
            k(f'v_mfma_f32_16x16x32_bf16 {v(YR+4*a_,4)}, {v(Sa[a_],4)}, {v(PI,4)}, {v(YR+4*a_,4)}')
            k(f'v_mfma_f32_16x16x32_bf16 {v(YI+4*a_,4)}, {v(Sb[a_],4)}, {v(PR,4)}, {v(YI+4*a_,4)}')
    cmul(TC, TS, -1, packB)
    stageB(S_, NS)
    cmul(WR_, WI_, +1, packB)
    stageB(NS, S_)
    def packL(h):
        for e in range(2):
            i = 2*h + e
            k(f'v_cvt_pk_bf16_f32 v{PR+(i&7)}, v{YR+i}, -v{YI+i}')
            k(f'ds_write_b32 v7, v{PR+(i&7)} offset:{8704 + (16*(i>>2)+(i&3))*RS}')
    cmul(TC, TS, +1, packL)
    k('s_barrier')
    stamp(k, 5)
    stageA(8704)
    for i in range(8):
        k(f'v_add_f32 v{XU+i}, v{XU+i}, v{YR+i}')
        k(f'v_fma_f32 v{XU+8+i}, -v{YI+i}, s55, v{XU+8+i}')
        k(f'v_cvt_pk_bf16_f32 v{XV+i}, v{XU+i}, v{XU+8+i}')
        k(f'buffer_store_dword v{XV+i}, v4, s[24:27], s{44+i} offen')
    stamp(k, 6)
    stamp_end(k, 0, 7)
    k('s_endpgm')

def gemm_role(k):
    VL, VC, VG = 1, 2, 3
    k(f's_sub_u32 s42, s2, {N_FFT}')
    k('s_and_b32 s43, s42, 15')
    k('s_lshr_b32 s44, s42, 4')
    k('s_sub_u32 s45, s42, 144')
    k('s_mul_i32 s46, s45, 86')
    k('s_lshr_b32 s46, s46, 8')
    k('s_mul_i32 s47, s46, 3')
    k('s_sub_u32 s47, s45, s47')
    k('s_add_u32 s47, s47, 16')
    k('s_cmp_lt_u32 s42, 144')
    k('s_cselect_b32 s43, s43, s47')
    k('s_cselect_b32 s44, s44, s46')
    k('s_lshl_b32 s43, s43, 2')
    k('s_add_u32 s43, s43, s3')
    srd(k, WS, 20, WS_END)
    k(f'v_lshlrev_b32 v11, 4, v{VL}')
    k('v_add_u32 v10, 36864, v11')
    k('s_mul_i32 s45, s44, 73728')
    k(f's_add_u32 s45, s45, {FA}')
    k('s_lshr_b32 s46, s3, 1')
    k('s_mul_i32 s46, s46, 36864')
    k('s_and_b32 s47, s3, 1')
    k('s_lshl_b32 s47, s47, 10')
    k('s_add_u32 s46, s46, s47')
    k('s_add_u32 s45, s45, s46')
    LW = k.newlabel('wof')
    k('s_cmp_ge_u32 s43, 56')
    k(f's_cbranch_scc1 {LW}')
    DB = 64
    ACC = 208
    FRG = 16
    def dma_chunk(c):
        for q in range(3):
            k(f's_add_u32 m0, s46, {(6*c+2*q)*2048}')
            for h in range(2):
                k(f'buffer_load_dwordx4 v11, s[24:27], s45 offen offset:{h*2048} lds')
            k('s_add_u32 s45, s45, 4096')
    def mainloop(fa_is_A):
        def rd(ks):
            for s_ in range(2):
                for t2 in range(2):
                    k(f'ds_read_b128 {v(FRG+(ks&1)*16+(s_*2+t2)*4,4)}, v{11-s_} offset:{(ks*2+t2)*1024}')
        for c in range(3):
            if c == 0: stamp(k, 1)
            k(f's_waitcnt vmcnt({(2-c)*18 + 12})')
            k('s_barrier')
            if c == 0: stamp(k, 2)
            rd(6*c)
            for ks in range(6*c, 6*c+6):
                if ks + 1 < 6*c + 6:
                    rd(ks + 1)
                for e in range(2):
                    for s_ in range(2):
                        for t2 in range(2):
                            A = ACC + ((s_*2+t2)*2+e)*4
                            Cop = '0' if ks == 0 else v(A, 4)
                            fa = v(FRG+(ks&1)*16+(s_*2+t2)*4, 4)
                            d = v(DB+(ks*2+e)*4, 4)
                            x, y = (fa, d) if fa_is_A else (d, fa)
                            k(f'v_mfma_f32_16x16x32_bf16 {v(A,4)}, {x}, {y}, {Cop}')
    for e in range(2):
        k('s_lshl_b32 s48, s43, 1')
        if e: k('s_add_u32 s48, s48, 1')
        k('s_mul_i32 s49, s48, 9363')
        k('s_lshr_b32 s49, s49, 16')
        k('s_mul_i32 s50, s49, 7')
        k(f's_sub_u32 s{56+e}, s48, s50')
        k('s_mul_i32 s49, s49, 126')
        k(f's_add_u32 s49, s49, s{56+e}')
        k(f's_lshl_b32 s{58+e}, s49, 10')
        k(f's_add_u32 s{60+e}, s{58+e}, {WQT}')
    for c in range(3):
        dma_chunk(c)
        for ks in range(6*c, 6*c+6):
            for e in range(2):
                k(f'buffer_load_dwordx4 {v(DB+(ks*2+e)*4,4)}, v11, s[24:27], s{60+e} offen')
                k(f's_add_u32 s{60+e}, s{60+e}, 7168')
    k(f'v_mov_b32 v4, {fl(C_AMP)}')
    k(f'v_mov_b32 v5, {fl(C_AMP*QSCALE)}')
    k(f'v_cmp_gt_u32 s[62:63], 4, v{VC}')
    for e in range(2):
        k(f's_cmp_eq_u32 s{56+e}, 4')
        k('s_cselect_b64 s[64:65], s[62:63], 0')
        k(f's_cmp_lt_u32 s{56+e}, 2')
        k('s_cselect_b64 s[64:65], -1, s[64:65]')
        k(f'v_cndmask_b32 v{6+e}, v4, v5, s[64:65]')
    k(f'v_cmp_eq_u32 s[62:63], 3, v{VG}')
    k('s_cmp_eq_u32 s44, 8')
    k('s_cselect_b64 s[62:63], s[62:63], 0')
    k(f'v_mov_b32 v4, {fl(1/24/C_AMP)}')
    k('v_cndmask_b32 v8, 1.0, v4, s[62:63]')
    k('v_cndmask_b32 v9, 1.0, 0, s[62:63]')
    k('s_mul_i32 s48, s44, 14336')
    k(f's_add_u32 s48, s48, {GWF}')
    for e in range(2):
        k(f's_add_u32 s{58+e}, s{58+e}, s48')
        k(f's_add_u32 s{60+e}, s{58+e}, 7168')
    mainloop(True)
    for e in range(2):
        for s_ in range(2):
            O = 16 + (e*2+s_)*4
            for t2 in range(2):
                A = ACC + ((s_*2+t2)*2+e)*4
                for r in range(4):
                    k(f'v_mul_f32 v{A+r}, v{6+e}, v{A+r}')
                if s_ == 1 and t2 == 1:
                    k(f'v_mul_f32 v{A+2}, v8, v{A+2}')
                    k(f'v_mul_f32 v{A+3}, v9, v{A+3}')
                for h in range(2):
                    k(f'v_cvt_pk_bf16_f32 v{O+t2*2+h}, v{A+2*h}, v{A+2*h+1}')
            k(f'buffer_store_dwordx4 {v(O,4)}, v11, s[24:27], s{58+2*s_+e} offen')
    stamp_end(k, 0, 3)
    k('s_endpgm')
    k.label(LW)
    k('s_sub_u32 s43, s43, 56')
    srd(k, 28, 14, 576*1152)
    k(f'v_lshrrev_b32 v4, 2, v{VC}')
    k(f'v_and_b32 v5, 3, v{VC}')
    k('v_lshl_add_u32 v4, v4, 3, v5')
    k('s_lshl_b32 s48, s43, 5')
    for e in range(2):
        k(f'v_add_u32 v5, s48, v4')
        if e: k('v_add_u32 v5, 4, v5')
        k('v_lshrrev_b32 v6, 4, v5')
        k('v_mul_u32_u24 v6, 18, v6')
        k('v_and_b32 v7, 15, v5')
        k('v_add_u32 v6, v6, v7')
        k('v_subrev_u32 v7, 0x200, v5')
        k('v_lshrrev_b32 v8, 1, v7')
        k('v_mul_u32_u24 v8, 18, v8')
        k('v_and_b32 v7, 1, v7')
        k('v_add3_u32 v7, v7, v8, 16')
        k('v_cmp_gt_u32 vcc, 0x200, v5')
        k('v_cndmask_b32 v6, v7, v6, vcc')
        k('v_mul_u32_u24 v6, 1152, v6')
        k(f'v_lshl_add_u32 v{12+e}, v{VG}, 4, v6')
    for c in range(3):
        dma_chunk(c)
        for ks in range(6*c, 6*c+6):
            for e in range(2):
                k(f'buffer_load_dwordx4 {v(DB+(ks*2+e)*4,4)}, v{12+e}, s[28:31], 0 offen offset:{ks*64}')
    k('s_lshl_b32 s48, s44, 6')
    k(f'v_mov_b32 v14, {fl(C_AMP)}')
    k(f'v_mov_b32 v15, {fl(1/24)}')
    for s_ in range(2):
        for t2 in range(2):
            i = s_*2 + t2
            k(f's_add_u32 s49, s48, {32*s_+4*t2}')
            k('v_add_u32 v5, s49, v4')
            k('v_cmp_lt_u32 vcc, 0x23d, v5')
            k(f'v_cndmask_b32 v{52+i}, v14, v15, vcc')
            k('v_lshrrev_b32 v6, 4, v5')
            k('v_mul_u32_u24 v6, 57, v6')
            k('v_lshrrev_b32 v6, 9, v6')
            k('v_mul_u32_u24 v7, 0x90, v6')
            k('v_sub_u32 v5, v5, v7')
            k('v_lshrrev_b32 v7, 5, v5')
            k('v_lshlrev_b32 v7, 11, v7')
            k('v_bfe_u32 v8, v5, 2, 1')
            k('v_lshl_add_u32 v7, v8, 10, v7')
            k('v_bfe_u32 v8, v5, 3, 2')
            k('v_lshl_add_u32 v7, v8, 6, v7')
            k('v_and_b32 v8, 3, v5')
            k('v_lshl_add_u32 v7, v8, 4, v7')
            k('v_lshlrev_b32 v8, 4, v5')
            k(f'v_add_u32 v8, {8192-2048}, v8')
            k('v_cmp_gt_u32 vcc, 0x80, v5')
            k('v_cndmask_b32 v7, v8, v7, vcc')
            k(f'v_mul_u32_u24 v6, {18*9*1024}, v6')
            k(f'v_lshl_add_u32 v6, v{VG}, 8, v6')
            k(f'v_add_u32 v{48+i}, v6, v7')
    k('s_mul_i32 s48, s43, 9216')
    k(f's_add_u32 s48, s48, {WOF}')
    k('s_cmp_lt_u32 s43, 18')
    k('s_cselect_b32 s48, s48, 0x40000000')
    mainloop(False)
    for s_ in range(2):
        for t2 in range(2):
            i = s_*2 + t2
            O = 16 + i*4
            for e in range(2):
                A = ACC + (i*2+e)*4
                for r in range(4):
                    k(f'v_mul_f32 v{A+r}, v{52+i}, v{A+r}')
                for h in range(2):
                    k(f'v_cvt_pk_bf16_f32 v{O+e*2+h}, v{A+2*h}, v{A+2*h+1}')
            k(f'buffer_store_dwordx4 {v(O,4)}, v{48+i}, s[24:27], s48 offen')
    stamp_end(k, 0, 3)
    k('s_endpgm')

def build_k2():
    k = Kern('k2_kernel')
    k.roles = [N_FFT]
    prologue(k, K2_GRID)
    stamp(k, 0); stamp(k, 1); stamp(k, 2)
    lane_ids(k, 1, 2, 3, 3)
    LG = k.newlabel('gemm')
    k(f's_cmp_ge_u32 s2, {N_FFT}')
    k(f's_cbranch_scc1 {LG}')
    fft_role(k)
    k.label(LG)
    gemm_role(k)
    return k

def build_k6():
    k = Kern('k6_kernel')
    prologue(k, K6_GRID, need_inputs=False)
    stamp(k, 0); stamp(k, 1); stamp(k, 2)
    lane_ids(k, 1, 2, 3, 3)
    fft_role(k, LO)
    return k
```

```python
from common import *

K3_GRID = 256
K3_LDS = 129024 + 512
QH = 73728

def build_k3(name='k3_kernel', lo=0):
    k = Kern(name)
    prologue(k, K3_GRID, need_inputs=False)
    stamp(k, 0); stamp(k, 1); stamp(k, 2)
    VL, VC, VG = 1, 2, 3
    lane_ids(k, VL, VC, VG, 3)
    k('s_bfe_u32 s42, s2, 0x20001')
    k('s_lshl_b32 s42, s42, 2')
    k('s_bfe_u32 s43, s2, 0x20003')
    k('s_add_u32 s42, s42, s43')
    k('s_and_b32 s43, s2, 1')
    k('s_lshl_b32 s43, s43, 3')
    k('s_lshr_b32 s44, s2, 5')
    k('s_add_u32 s43, s43, s44')
    k('s_lshl_b32 s42, s42, 2')
    k('s_add_u32 s42, s42, s3')
    k('s_mul_i32 s44, s42, 36864')
    if lo: k(f's_add_u32 s44, s44, {lo}')
    k('s_add_u32 s45, s44, 18432')
    k('s_mul_i32 s50, s43, 129024')
    k(f's_add_u32 s50, s50, {GWF}')
    k('s_mul_i32 s51, s3, 7168')
    k(f'v_lshlrev_b32 v11, 4, v{VL}')
    k(f'v_lshrrev_b32 v4, 3, v{VC}')
    k('v_mul_u32_u24 v4, 0x4800, v4')
    k(f'v_lshl_add_u32 v4, v{VG}, 8, v4')
    k(f'v_bfe_u32 v5, v{VC}, 2, 1')
    k('v_lshl_add_u32 v4, v5, 7, v4')
    k(f'v_and_b32 v5, 3, v{VC}')
    k('v_lshl_add_u32 v4, v5, 4, v4')
    if 'A' in os.environ.get('V3', ''):
        k('v_lshlrev_b32 v4, 4, v1')
    srd(k, WS, 20, WS_END)
    XA = 48
    ACC = 192
    BF = 256
    def issue_chunk(c):
        if c < 4:
            for (f0, n) in ((0, 4), (4, 3)):
                k(f's_add_u32 m0, s51, {(28*c+f0)*1024}')
                k(f's_add_u32 s52, s50, m0')
                for q in range(n):
                    k(f'buffer_load_dwordx4 v11, s[24:27], s52 offen offset:{q*1024} lds')
        else:
            k('s_lshl_b32 s52, s3, 12')
            k('s_min_u32 s52, s52, 10240')
            k(f's_add_u32 m0, s52, {112*1024}')
            k(f's_add_u32 s52, s50, m0')
            for q in range(4):
                k(f'buffer_load_dwordx4 v11, s[24:27], s52 offen offset:{q*1024} lds')
        for ks in range(4*c, min(4*c+4, 18)):
            for tp in range(2):
                k(f'buffer_load_dwordx4 {v(XA+(ks*2+tp)*4,4)}, v4, s[24:27], s44 offen offset:{(ks&3)*1024+tp*64}' if 'A' not in os.environ.get('V3', '') else
                  f'buffer_load_dwordx4 {v(XA+(ks*2+tp)*4,4)}, v4, s[24:27], s{44+tp} offen offset:{(ks&3)*1024}')
        if c < 4:
            k('s_add_u32 s44, s44, 4096')
            k('s_add_u32 s45, s45, 4096')
    for c in range(4):
        issue_chunk(c)
    k('v_add_u32 v10, 0x10000, v11')
    k(f's_mul_i32 s54, s43, {2*QH}')
    k('s_mul_i32 s55, s42, 1152')
    k('s_add_u32 s54, s54, s55')
    k(f's_add_u32 s54, s54, {QI+lo}')
    k(f's_mul_i32 s55, s43, {2*KVH}')
    k(f's_mul_i32 s56, s42, {KVT}')
    k('s_add_u32 s55, s55, s56')
    k(f's_add_u32 s55, s55, {KV+lo}')
    k(f's_add_u32 s56, s55, {KVH}')
    k(f'v_lshrrev_b32 v5, 3, v{VC}')
    k(f'v_and_b32 v6, 7, v{VC}')
    k('v_lshl_add_u32 v5, v5, 4, v6')
    k(f'v_and_b32 v6, 1, v{VG}')
    k('v_lshlrev_b32 v6, 9, v6')
    k('v_lshl_add_u32 v6, v5, 4, v6')
    k(f'v_lshrrev_b32 v7, 1, v{VG}')
    k(f'v_mul_u32_u24 v12, {QH}, v7')
    k('v_add_u32 v12, v12, v6')
    k(f'v_mul_u32_u24 v13, {KVH}, v7')
    k('v_add_u32 v13, v13, v6')
    k(f'v_cmp_eq_u32 vcc, 4, v{VC}')
    k(f'v_cndmask_b32 v14, v{VC}, 18, vcc')
    k('v_lshlrev_b32 v14, 4, v14')
    k(f'v_mul_u32_u24 v6, 0x130, v{VG}')
    k('s_movk_i32 s57, 0x480')
    k('v_add3_u32 v14, v14, v6, s57')
    k(f'v_mov_b32 v7, {OOR}')
    k(f'v_cmp_eq_u32 s[58:59], 0, v{VG}')
    k(f'v_cmp_eq_u32 s[60:61], 1, v{VG}')
    k(f'v_cmp_eq_u32 s[62:63], 2, v{VG}')
    k(f'v_cmp_eq_u32 s[64:65], 3, v{VG}')
    k('v_lshlrev_b32 v5, 2, v5')
    k('v_add_u32 v5, 0x400, v5')
    k(f's_add_u32 s57, s54, {QH}')
    for e in range(2):
        k(f'v_mov_b32 v6, s{54 if e == 0 else 57}')
        k(f'v_cndmask_b32 v{15+e}, v7, v6, s[58:59]')
        k(f'v_mov_b32 v6, s{55+e}')
        k(f'v_cndmask_b32 v{15+e}, v{15+e}, v6, s[60:61]')
        k(f'v_add_u32 v{15+e}, v{15+e}, v5')
    k(f'v_lshrrev_b32 v5, 2, v{VC}')
    k('v_mul_u32_u24 v5, 0x130, v5')
    k(f'v_and_b32 v6, 3, v{VC}')
    k('v_lshl_add_u32 v5, v6, 1, v5')
    k(f'v_add_u32 v6, {1152+256}, v5')
    k('v_cndmask_b32 v17, v7, v6, s[62:63]')
    k(f'v_add_u32 v6, {1152+64}, v5')
    k('v_cndmask_b32 v17, v17, v6, s[64:65]')
    k(f'v_add_u32 v6, {1152+272}, v5')
    k('v_cndmask_b32 v18, v7, v6, s[62:63]')
    k('v_mov_b32 v6, 0xffff')
    k('v_cndmask_b32 v19, -1, v6, s[64:65]')
    k('s_lshl_b32 s57, s3, 7')
    k('s_add_u32 s57, s57, 129024')
    k(f'v_lshrrev_b32 v5, 5, v{VL}')
    k('v_lshlrev_b32 v5, 6, v5')
    k(f'v_lshl_add_u32 v5, v{VC}, 2, v5')
    k('v_add_u32 v20, s57, v5')
    k(f'v_lshlrev_b32 v5, 2, v{VC}')
    k('v_add_u32 v21, s57, v5')
    k(f'v_lshlrev_b32 v5, 4, v{VG}')
    k('v_add_u32 v22, s57, v5')
    k(f's_mov_b32 s66, {fl(1/576)}')
    k(f'v_mov_b32 v23, {fl(1e-5)}')
    DA = 24
    RC = 28
    RR = 32
    def rd(ks):
        out = []
        for tile in range(7):
            f = ks*7 + tile
            base, off = (11, f*1024) if f < 64 else (10, (f-64)*1024)
            out.append(f'ds_read_b128 {R(BF+(ks&1)*28+tile*4,4)}, v{base} offset:{off}')
        return out
    def dots(ks):
        out = []
        if ks == 17:
            for tp in range(2):
                x = XA + (ks*2+tp)*4 + 3
                out.append(f'v_and_b32 v{x}, v19, v{x}')
        for q in range(4):
            for tp in range(2):
                x = XA + (ks*2+tp)*4 + q
                d = DA + tp*2 + (q & 1)
                c_ = '0' if (ks == 0 and q < 2) else f'v{d}'
                out.append(f'v_dot2_f32_bf16 v{d}, v{x}, v{x}, {c_}')
        return out
    rchain = [
        f'v_add_f32 v{DA}, v{DA}, v{DA+1}',
        f'v_add_f32 v{DA+2}, v{DA+2}, v{DA+3}',
        f'v_permlane32_swap_b32 v{DA}, v{DA+2}',
        f'v_add_f32 v{DA}, v{DA}, v{DA+2}',
        f'v_mov_b32 v{DA+1}, v{DA}',
        f'v_permlane16_swap_b32 v{DA}, v{DA+1}',
        f'v_add_f32 v{DA}, v{DA}, v{DA+1}',
        f'v_fma_f32 v{DA}, v{DA}, s66, v23',
        f'v_rsq_f32 v{DA}, v{DA}',
        f'ds_write_b32 v20, v{DA}',
        f'ds_read2_b32 {v(RC,2)}, v21 offset0:0 offset1:16',
        f'ds_read_b128 {v(RR,4)}, v22',
        f'ds_read_b128 {v(RR+4,4)}, v22 offset:64',
    ]
    def mf(ks):
        out = []
        for tile in range(7):
            for tp in range(2):
                A = ACC + (tile*2+tp)*4
                Cop = '0' if ks == 0 else v(A, 4)
                b = R(BF+(ks&1)*28+tile*4, 4)
                x = v(XA+(ks*2+tp)*4, 4)
                p, q = (b, x) if tile < 5 else (x, b)
                out.append(f'v_mfma_f32_16x16x32_bf16 {v(A,4)}, {p}, {q}, {Cop}')
        return out
    for c in range(5):
        if c == 0:
            stamp(k, 1)
            k(f's_waitcnt vmcnt({8 + 3*15})')
            k('s_barrier')
            stamp(k, 2)
            issue_chunk(4)
        elif c < 4:
            k(f's_waitcnt vmcnt({8 + (3-c)*15 + 8})')
            k('s_barrier')
            stamp(k, 2 + c)
        else:
            k('s_waitcnt vmcnt(4)')
            k('s_barrier')
        lo, hi = 4*c, min(4*c+4, 18)
        emit(k, rd(lo))
        for ks in range(lo, hi):
            fill = []
            if ks + 1 < hi:
                fill = rd(ks+1)
            if ks < 16:
                d = dots(ks)
            elif ks == 16:
                d = dots(16) + dots(17)
            else:
                d = rchain
            emit(k, inter(mf(ks), fill, d))
    stamp(k, 6)
    O = 48
    for which, (voff, soff) in enumerate(((12, 54), (13, 55))):
        for tp in range(2):
            o = O + (which*2+tp)*4
            for t2 in range(2):
                A = ACC + ((which*2+t2)*2+tp)*4
                for r in range(4):
                    k(f'v_mul_f32 v{A+r}, v{RC+tp}, v{A+r}')
                for h in range(2):
                    k(f'v_cvt_pk_bf16_f32 v{o+t2*2+h}, v{A+2*h}, v{A+2*h+1}')
            k(f'buffer_store_dwordx4 {v(o,4)}, v{voff}, s[24:27], s{soff} offen offset:{tp*128}')
    for e in range(2):
        o = O + 16 + e*4
        for tp in range(2):
            A = ACC + ((5+e)*2+tp)*4
            for r in range(4):
                k(f'v_mul_f32 v{A+r}, v{RR+tp*4+r}, v{A+r}')
            for h in range(2):
                k(f'v_cvt_pk_bf16_f32 v{o+tp*2+h}, v{A+2*h}, v{A+2*h+1}')
        k(f'buffer_store_dwordx4 {v(o,4)}, v14, s[24:27], s{55+e} offen')
    k('v_mov_b32 v6, 0x3f803f80')
    for tp in range(2):
        A = ACC + (4*2+tp)*4
        for r in range(4):
            k(f'v_mul_f32 v{A+r}, v{RC+tp}, v{A+r}')
        for e in range(2):
            o = O + 24 + tp*2 + e
            k(f'v_cvt_pk_bf16_f32 v{o}, v{A+2*e}, v{A+2*e+1}')
            k(f'v_cndmask_b32 v{o}, v{o}, v6, s[64:65]')
            k(f'buffer_store_dword v{o}, v{15+e}, s[24:27], 0 offen offset:{tp*32}')
            k(f'buffer_store_short v{o}, v17, s[24:27], s{55+e} offen offset:{tp*8}')
            k(f'buffer_store_short_d16_hi v{o}, v18, s[24:27], s{55+e} offen offset:{tp*8}')
    stamp_end(k, 0, 7)
    k('s_endpgm')
    return k
```

```python
from common import *
from gen_k3 import QH

K4_GRID = 256
K4_LDS = 64 * KVT + KVT
HALF = 32 * KVT
NT = 4

def build_k4(name='k4_kernel', lo=0):
    k = Kern(name)
    prologue(k, K4_GRID, need_inputs=False)
    stamp(k, 0)
    QF1, QF2, KB1, KB2, VB, P, S, O = 8, 16, 20, 28, 32, 48, 64, 96
    AK1, AK2, AV, BK1, BK2, BV, MX0, MX1 = 56, 57, 58, 59, 60, 61, 62, 63
    k('v_lshrrev_b32 v1, 6, v0')
    k('v_readfirstlane_b32 s3, v1')
    k('v_and_b32 v1, 63, v0')
    k('s_and_b32 s40, s2, 7')
    k('s_lshl_b32 s40, s40, 2')
    k('s_lshr_b32 s41, s2, 6')
    k('s_add_u32 s40, s40, s41')
    k('s_bfe_u32 s41, s2, 0x30003')
    k('s_and_b32 s42, s3, 3')
    k('s_lshr_b32 s43, s3, 2')
    k('s_lshl_b32 s41, s41, 3')
    k('s_lshl_b32 s44, s42, 1')
    k('s_add_u32 s41, s41, s44')
    k('s_add_u32 s41, s41, s43')
    k(f's_mul_i32 s44, s40, {QH}')
    k(f's_add_u32 s44, s44, {QI+lo}')
    k('s_mul_i32 s45, s41, 1152')
    k('s_xor_b32 s46, s41, 1')
    k('s_mul_i32 s46, s46, 1152')
    k('s_add_u32 s45, s45, s44')
    k('s_add_u32 s46, s46, s44')
    k(f's_mul_i32 s47, s40, {KVH}')
    k(f's_add_u32 s47, s47, {KV+lo}')
    k(f's_mul_i32 s48, s43, {HALF}')
    k('s_lshl_b32 s49, s42, 10')
    k('s_add_u32 s49, s49, s48')
    k('v_lshlrev_b32 v2, 4, v1')
    k('v_and_b32 v3, 31, v1')
    k('v_lshlrev_b32 v4, 2, v3')
    k('v_lshrrev_b32 v5, 5, v1')
    k('v_lshl_or_b32 v6, v5, 30, v4')
    srd(k, WS, 20, WS_END)
    for qt in range(2):
        k(f'buffer_load_dwordx4 {v(QF1+4*qt,4)}, v2, s[24:27], s{45+qt} offen')
        k(f'buffer_load_dword v{QF2+2*qt}, v6, s[24:27], s{45+qt} offen offset:1024')
    for n in range(19):
        if n == 0:
            k('s_mov_b32 m0, s49')
        elif n < 18:
            k(f's_add_u32 m0, s49, {n*4096}')
        else:
            k('s_min_u32 s50, s42, 1')
            k('s_lshl_b32 s50, s50, 10')
            k('s_add_u32 s50, s50, s48')
            k(f's_add_u32 m0, s50, {72*1024}')
        k('s_add_u32 s50, s47, m0')
        k('buffer_load_dwordx4 v2, s[24:27], s50 offen lds')
    k(f'v_add_u32 v{BK1}, s48, v2')
    k('s_add_u32 s50, s48, 1024')
    k(f'v_add_u32 v{BK2}, s50, v4')
    k('v_and_b32 v7, 0x13, v3')
    k('v_bfe_u32 v6, v3, 2, 1')
    k('v_lshl_or_b32 v7, v6, 3, v7')
    k('v_bfe_u32 v6, v3, 3, 1')
    k('v_lshl_or_b32 v7, v6, 2, v7')
    k('v_cmp_eq_u32 vcc, 4, v7')
    k('v_cndmask_b32 v6, v7, 18, vcc')
    k('v_cmp_lt_u32 vcc, 17, v3')
    k('v_cndmask_b32 v6, v6, 4, vcc')
    k('v_lshlrev_b32 v6, 4, v6')
    k('v_mul_u32_u24 v4, 0x130, v5')
    k('s_add_u32 s50, s48, 1152')
    k(f'v_add3_u32 v{BV}, v6, v4, s50')
    if True:
        k('v_and_b32 v6, 0x1b, v3')
        k('v_cmp_lt_u32 vcc, 18, v6')
        k('v_mov_b32 v6, 0x100000')
        k(f'v_cndmask_b32 v{BV}, v{BV}, v6, vcc')
        k('v_cmp_eq_u32 vcc, 20, v3')
        k(f'v_cndmask_b32 v{BV}, v{BV}, v6, vcc')
        k('v_cmp_eq_u32 vcc, 21, v3')
        k(f'v_cndmask_b32 v{BV}, v{BV}, v6, vcc')
    k('v_lshrrev_b32 v4, 4, v3')
    k('v_mul_u32_u24 v4, 0x4800, v4')
    k('v_and_b32 v6, 15, v7')
    k('v_lshl_add_u32 v4, v6, 4, v4')
    k('v_lshl_add_u32 v3, v5, 8, v4')
    k('v_lshl_or_b32 v4, v5, 30, v4')
    k('s_mul_i32 s52, s41, 36864')
    k(f's_add_u32 s52, s52, {OR+lo}')
    k('s_lshr_b32 s53, s40, 2')
    k('s_lshl_b32 s53, s53, 8')
    k('s_and_b32 s54, s40, 3')
    k('s_lshl_b32 s54, s54, 2')
    k('s_add_u32 s53, s53, s54')
    k('s_add_u32 s53, s53, s52')
    k('s_add_u32 s53, s53, 16384')
    k('s_lshl_b32 s54, s40, 9')
    k('s_add_u32 s52, s52, s54')
    k('s_mul_i32 s54, s3, 3072')
    k('v_add_u32 v5, s54, v2')
    k('s_xor_b32 s54, s3, 4')
    k('s_mul_i32 s54, s54, 3072')
    k('v_add_u32 v6, s54, v2')
    for b in range(2):
        k(f'v_mov_b32 v{KB2+2*b+1}, 0x3f803f80')
    k('s_mov_b32 s56, 0')
    k('s_mov_b32 s57, 0')
    k('s_mov_b32 s58, 3')
    k('s_mov_b32 s60, 0xffff0000')
    RETRY = k.newlabel('retry')
    k.label(RETRY)
    for r in range(32):
        k(f'v_mov_b32 v{O+r}, 0')
    for r in range(4):
        k(f'v_mov_b32 v{P+4+r}, 0')
        k(f'v_mov_b32 v{VB+12+r}, 0')
    for qt in range(2):
        k(f'v_mov_b32 v{QF2+2*qt+1}, 0')
        k(f'v_mov_b32 v{MX0+qt}, 0xff800000')
    k(f'v_mov_b32 v{AK1}, v{BK1}')
    k(f'v_mov_b32 v{AK2}, v{BK2}')
    k(f'v_mov_b32 v{AV}, v{BV}')
    k('s_mov_b32 s59, 0')
    L1 = k.newlabel('skipA')
    k('s_cmp_lg_u32 s57, 0')
    k(f's_cbranch_scc1 {L1}')
    k('s_waitcnt vmcnt(18)')
    k('s_barrier')
    k.label(L1)
    stamp(k, 1)
    def qk(kb, qt):
        return [f'v_mfma_f32_32x32x16_bf16 {v(S+16*qt,16)}, {v(KB1+4*kb,4)}, {v(QF1+4*qt,4)}, 0',
                f'v_mfma_f32_32x32x8bf16_1k {v(S+16*qt,16)}, {v(KB2+2*kb,2)}, {v(QF2+2*qt,2)}, {v(S+16*qt,16)}']
    MP = k.newlabel('mp')
    k.label(MP)
    k(f'v_add_u32 v{P}, s56, v{BK1}')
    k(f'v_add_u32 v{P+1}, s56, v{BK2}')
    k(f'ds_read_b128 {v(KB1,4)}, v{P}')
    k(f'ds_read_b32 v{KB2}, v{P+1}')
    for sub in range(2):
        k(f'ds_read_b128 {v(VB+4*sub,4)}, v{BV} offset:{sub*608}')
    a0, a1 = qk(0, 0), qk(0, 1)
    emit(k, [a0[0], a1[0], a0[1], a1[1]])
    for qt in range(2):
        for j in range(8):
            k(f'v_max3_f32 v{MX0+qt}, v{S+16*qt+2*j}, v{S+16*qt+2*j+1}, v{MX0+qt}')
    k(f's_sub_u32 s56, s56, {KVT}')
    k(f's_cbranch_scc0 {MP}')
    k(f'v_permlane32_swap_b32 v{MX0}, v{MX1}')
    k(f'v_max_f32 v{MX0}, v{MX0}, v{MX1}')
    k(f'v_xor_b32 v{P}, 0x80000000, v{MX0}')
    k(f'v_and_b32 v{P+1}, s60, v{P}')
    k(f'v_sub_f32 v{P}, v{P}, v{P+1}')
    k(f'v_and_b32 v{P+2}, s60, v{P}')
    k(f'v_sub_f32 v{P}, v{P}, v{P+2}')
    k(f'v_lshrrev_b32 v{P+1}, 16, v{P+1}')
    k(f'v_or_b32 v{QF2+1}, v{P+1}, v{P+2}')
    k(f'v_lshrrev_b32 v{QF2+3}, 16, v{P}')
    k(f'v_mov_b32 v{MX1}, v{MX0}')
    k(f'v_permlane32_swap_b32 v{QF2+1}, v{QF2+3}')
    k(f'v_permlane32_swap_b32 v{MX0}, v{MX1}')
    emit(k, a0)
    LOOP = k.newlabel('loop')
    stubs = []
    def site(cond, nmax_list):
        st, back = k.newlabel('stub'), k.newlabel('back')
        k(cond)
        k(f's_cbranch_scc1 {st}')
        k.label(back)
        stubs.append((st, back, nmax_list))
    E = lambda qt, j: f'v_exp_f32 v{S+16*qt+j}, v{S+16*qt+j}'
    C = lambda qt, j: f'v_cvt_pk_bf16_f32 v{P+j}, v{S+16*qt+2*j}, v{S+16*qt+2*j+1}'
    def pv(kb, sub, qt):
        return f'v_mfma_f32_32x32x16_bf16 {v(O+16*qt,16)}, {v(VB+8*kb+4*sub,4)}, {v(P+4*sub,4)}, {v(O+16*qt,16)}'
    LENT = k.newlabel('lent')
    stamp(k, 2)
    k('s_nop 10')
    k(f's_branch {LENT}')
    k.label(LOOP)
    site('s_cmp_lt_u32 s59, s58', 'top')
    k.label(LENT)
    for u in range(2*NT):
        ktl, qt = u >> 1, u & 1
        if u == 1:
            site('s_cmp_eq_u32 s59, s57', 1)
        if u == 4:
            site('s_cmp_eq_u32 s59, s57', 2)
        nb = (ktl + 1) & 1
        if qt == 0:
            rds = [f'ds_read_b128 {v(KB1+4*nb,4)}, v{AK1} offset:{(ktl+1)*KVT}',
                   f'ds_read_b32 v{KB2+2*nb}, v{AK2} offset:{(ktl+1)*KVT}']
            adds = [f'v_add_u32 v{AK1}, {NT*KVT}, v{AK1}', f'v_add_u32 v{AK2}, {NT*KVT}, v{AK2}']
        else:
            rds = [f'ds_read_b128 {v(VB+8*nb+4*sub,4)}, v{AV} offset:{(ktl+1)*KVT+sub*608}' for sub in range(2)]
            adds = [f'v_add_u32 v{AV}, {NT*KVT}, v{AV}']
        if ktl != NT - 1:
            adds = []
        q = qk(((u + 1) >> 1) & 1, (u + 1) & 1)
        seq = [E(qt,0), rds[0], E(qt,1), rds[1], pv(((u-1) >> 1) & 1, 1, (u-1) & 1), E(qt,2), E(qt,3), E(qt,4), C(qt,0), q[0],
               E(qt,5), E(qt,6), E(qt,7), C(qt,1), C(qt,2), q[1], C(qt,3), E(qt,8), E(qt,9), pv(ktl & 1, 0, qt)] + adds + \
              [E(qt,j) for j in range(10, 16)] + [C(qt,j) for j in range(4, 8)]
        VAR = os.environ.get('VAR', '')
        if 'a' in VAR: seq = [x for x in seq if not x.startswith('ds_')]
        if 'b' in VAR: seq = [x for x in seq if 'mfma' not in x]
        if 'c' in VAR: seq = [x for x in seq if 'cvt' not in x]
        if 'd' in VAR: seq = [x for x in seq if '32x32x8' not in x]
        if 'e' in VAR: seq = [x for x in seq if 'exp' not in x]
        if 'p' in VAR:
            seq = [f's_setprio {u & 1}'] + seq
        if 'q' in VAR:
            seq = ['s_setprio 1'] + seq[:16] + ['s_setprio 0'] + seq[16:]
        if u == 2*NT - 1:
            seq.insert(len(seq) - 3, 's_add_u32 s59, s59, 1')
            seq.insert(len(seq) - 1, f's_cmp_lt_u32 s59, {32 // NT}')
        emit(k, seq)
    k(f's_cbranch_scc1 {LOOP}')
    k(pv((NT-1) & 1, 1, 1))
    stamp(k, 3)
    k(f's_mov_b32 s61, {fl(2.0**40)}')
    k(f'v_max_f32 v{P}, v{O+10}, v{O+26}')
    k(f'v_add_f32 v{P+1}, v{O+10}, v{O+26}')
    k(f'v_cmp_nlt_f32 vcc, v{P+1}, s61')
    OKL = k.newlabel('ok')
    k(f's_cbranch_vccz {OKL}')
    k('s_cmp_lg_u32 s57, 0')
    k(f's_cbranch_scc1 {OKL}')
    k(f's_mov_b32 s56, {31*KVT}')
    k('s_mov_b32 s57, 99')
    k('s_mov_b32 s58, 0')
    k(f's_branch {RETRY}')
    k.label(OKL)
    k(f'v_mov_b32 v{O+16+11}, v{MX1}')
    k('s_barrier')
    for j in range(3):
        k(f'ds_write_b128 v5, {v(O+16+4*j,4)} offset:{j*1024}')
    k('s_barrier')
    X = S
    for j in (2, 0, 1):
        k(f'ds_read_b128 {v(X+4*j,4)}, v6 offset:{j*1024}')
    k(f'v_max_f32 v{P}, v{MX0}, v{X+11}')
    k(f'v_sub_f32 v{P+1}, v{MX0}, v{P}')
    k(f'v_sub_f32 v{P+2}, v{X+11}, v{P}')
    k(f'v_exp_f32 v{P+1}, v{P+1}')
    k(f'v_exp_f32 v{P+2}, v{P+2}')
    k(f'v_mul_f32 v{P}, v{P+1}, v{O+10}')
    k(f'v_fmac_f32 v{P}, v{P+2}, v{X+10}')
    k(f'v_rcp_f32 v{P}, v{P}')
    k(f'v_mul_f32 v{P+1}, v{P+1}, v{P}')
    k(f'v_mul_f32 v{P+2}, v{P+2}, v{P}')
    for j in range(10):
        k(f'v_mul_f32 v{O+j}, v{P+1}, v{O+j}')
        k(f'v_fmac_f32 v{O+j}, v{P+2}, v{X+j}')
    for j in range(5):
        k(f'v_cvt_pk_bf16_f32 v{P+4+j if j < 4 else P+3}, v{O+2*j}, v{O+2*j+1}')
    k(f'buffer_store_dwordx4 {v(P+4,4)}, v3, s[24:27], s52 offen')
    k(f'buffer_store_dword v{P+3}, v4, s[24:27], s53 offen')
    stamp_end(k, 0, 4)
    k('s_endpgm')
    for st, back, what in stubs:
        k.label(st)
        if what == 'top':
            l2 = k.newlabel('w9')
            k('s_cmp_eq_u32 s59, 1')
            k(f's_cbranch_scc1 {l2}')
            k('s_waitcnt vmcnt(0)')
            k.label(l2)
            k(f's_waitcnt vmcnt({18-9})')
        else:
            k(f's_waitcnt vmcnt({18-what})')
        k('s_barrier').nobarwait = True
        k(f's_branch {back}')
    return k
```

```python
from common import *

K5_GRID = 256
K5_LDS = 36864 + 2048
K9_LDS = 73728

def build_proj(name, final):
    nks = 36 if final else 18
    k = Kern(name)
    prologue(k, K5_GRID, need_inputs=final)
    stamp(k, 0); stamp(k, 1); stamp(k, 2)
    VL, VC, VG = 1, 2, 3
    lane_ids(k, VL, VC, VG, 3)
    k('s_and_b32 s40, s2, 7')
    k('s_lshl_b32 s40, s40, 3')
    k('s_lshr_b32 s41, s2, 5')
    k('s_add_u32 s40, s40, s41')
    k('s_bfe_u32 s41, s2, 0x20003')
    k('s_mul_i32 s42, s40, 36864')
    k(f's_mul_i32 s43, s41, {nks*9216}')
    k(f's_add_u32 s43, s43, {FBW if final else WOF}')
    k('s_lshl_b32 s44, s3, 11')
    k('s_add_u32 s44, s44, s43')
    k('s_add_u32 s45, s43, 8192')
    k('s_cmp_lt_u32 s3, 2')
    k(f's_cselect_b32 s45, s45, {OOR}')
    k(f'v_lshlrev_b32 v4, 4, v{VL}')
    srd(k, WS, 20, WS_END)
    ACC, AF, XV, B = 16, 36, 60, 72
    k('s_and_b32 s46, s3, 1')
    k('s_mul_i32 s46, s46, 18432')
    k(f'v_add_u32 v5, s46, v4')
    k('s_lshr_b32 s47, s3, 1')
    k('s_mul_i32 s47, s47, 3072')
    k('s_add_u32 s46, s46, s47')
    k('s_add_u32 s47, s46, s42')
    def issue(c):
        img = c // 3
        src = (XR if img == 0 else OR) + LO if final else OR
        k(f's_add_u32 m0, s46, {img*36864 + (c%3)*6144}')
        k(f's_add_u32 s48, s47, {src + (c%3)*6144}')
        for q in range(3):
            k(f'buffer_load_dwordx4 v4, s[24:27], s48 offen offset:{q*1024} lds')
        for ks in range(6*c, 6*c+6):
            for e in range(2):
                k(f'buffer_load_dwordx4 {R(B+(ks*3+e)*4,4)}, v4, s[24:27], s44 offen offset:{e*1024}')
            k(f'buffer_load_dwordx4 {R(B+(ks*3+2)*4,4)}, v4, s[24:27], s45 offen')
            k('s_add_u32 s44, s44, 9216')
            k('s_add_u32 s45, s45, 9216')
    nch = nks // 6
    for c in range(3):
        issue(c)
    if not final:
        k('s_mul_i32 s50, s41, 4608')
        k('s_add_u32 s50, s50, s42')
        k('s_lshl_b32 s51, s3, 10')
        k('s_add_u32 s51, s51, s50')
        k('s_add_u32 s52, s51, 18432')
        k('s_mul_i32 s53, s3, 18432')
        k('s_add_u32 s53, s53, s50')
        k('s_add_u32 s53, s53, 4096')
        k('s_cmp_lt_u32 s3, 2')
        k(f's_cselect_b32 s53, s53, {OOR}')
        k(f'v_lshrrev_b32 v6, 1, v{VG}')
        k('v_lshlrev_b32 v6, 8, v6')
        k(f'v_lshl_add_u32 v6, v{VC}, 4, v6')
        k(f'v_and_b32 v7, 1, v{VG}')
        k('v_lshl_add_u32 v6, v7, 3, v6')
        for tp in range(2):
            k(f'buffer_load_dwordx4 {v(XV+4*tp,4)}, v4, s[24:27], s{51+tp} offen')
        k(f'buffer_load_dwordx2 {v(XV+8,2)}, v6, s[24:27], s53 offen')
        extra = 3
        for q in range(3):
            k(f's_add_u32 s{51+q}, s{51+q}, {LO}')
    else:
        extra = 0
        srd(k, 28, 16, 2048*1152)
        k('s_and_b32 s50, s40, 1')
        k('s_lshl_b32 s50, s50, 10')
        k('s_lshr_b32 s51, s40, 1')
        k('s_add_u32 s50, s50, s51')
        k('s_mul_i32 s50, s50, 1152')
        k('s_mul_i32 s51, s41, 288')
        k('s_add_u32 s50, s50, s51')
        k('s_lshl_b32 s51, s3, 6')
        k('s_add_u32 s51, s51, s50')
        k(f's_add_u32 s52, s51, {512*1152}')
        k(f's_mul_i32 s53, s3, {512*1152}')
        k('s_add_u32 s53, s53, s50')
        k('s_add_u32 s53, s53, 256')
        k('s_cmp_lt_u32 s3, 2')
        k(f's_cselect_b32 s53, s53, {OOR}')
        k(f'v_mul_u32_u24 v6, {32*1152}, v{VC}')
        k(f'v_lshl_add_u32 v7, v{VG}, 4, v6')
        k(f'v_lshl_add_u32 v6, v{VG}, 3, v6')
    def rd(ks):
        off = (ks // 18) * 36864 + (ks % 18) * 1024
        b = AF + (ks & 1) * 12
        return [f'ds_read_b128 {v(b,4)}, v4 offset:{off}', f'ds_read_b128 {v(b+4,4)}, v4 offset:{off+18432}',
                f'ds_read_b128 {v(b+8,4)}, v5 offset:{off}']
    def mf(ks):
        out = []
        b = AF + (ks & 1) * 12
        for tp in range(2):
            for e in range(2):
                A = ACC + (tp*2+e)*4
                out.append(f'v_mfma_f32_16x16x32_bf16 {v(A,4)}, {R(B+(ks*3+e)*4,4)}, {v(b+4*tp,4)}, {"0" if ks == 0 else v(A,4)}')
        A = ACC + 16
        out.append(f'v_mfma_f32_16x16x32_bf16 {v(A,4)}, {R(B+(ks*3+2)*4,4)}, {v(b+8,4)}, {"0" if ks == 0 else v(A,4)}')
        return out
    if final:
        k('v_add_u32 v8, 0x9000, v4')
        k('v_add_u32 v9, 0x9000, v5')
        def rd(ks):
            a, b8 = (4, 5) if ks < 18 else (8, 9)
            off = (ks % 18) * 1024
            b = AF + (ks & 1) * 12
            return [f'ds_read_b128 {v(b,4)}, v{a} offset:{off}', f'ds_read_b128 {v(b+4,4)}, v{a} offset:{off+18432}',
                    f'ds_read_b128 {v(b+8,4)}, v{b8} offset:{off}']
    for c in range(nch):
        issued = min(c + 3, nch)
        n_after = 18 + (issued - 1 - c) * 21 + (extra if True else 0)
        if c == 0: stamp(k, 1)
        k(f's_waitcnt vmcnt({min(n_after, 63)})')
        k('s_barrier')
        if c == 0: stamp(k, 2)
        if c + 3 < nch:
            issue(c + 3)
        emit(k, rd(6*c))
        for ks in range(6*c, 6*c+6):
            emit(k, inter(mf(ks), rd(ks+1) if ks + 1 < 6*c+6 else []))
    O = 36
    if final:
        for tp in range(2):
            for q in range(4):
                A = ACC + tp*8 + 2*q
                k(f'v_cvt_pk_bf16_f32 v{O+4*tp+q}, v{A}, v{A+1}')
            k(f'buffer_store_dwordx4 {v(O+4*tp,4)}, v7, s[28:31], s{51+tp} offen')
        for q in range(2):
            k(f'v_cvt_pk_bf16_f32 v{O+8+q}, v{ACC+16+2*q}, v{ACC+17+2*q}')
        k(f'buffer_store_dwordx2 {v(O+8,2)}, v6, s[28:31], s53 offen')
        stamp_end(k, 0, 3)
        k('s_endpgm')
        return k
    k('s_mov_b32 s54, 0xffff0000')
    for i in range(10):
        A = ACC + 2*i
        k(f'v_lshlrev_b32 v{O+12}, 16, v{XV+i}')
        k(f'v_and_b32 v{O+13}, s54, v{XV+i}')
        k(f'v_add_f32 v{A}, v{A}, v{O+12}')
        k(f'v_add_f32 v{A+1}, v{A+1}, v{O+13}')
        k(f'v_cvt_pk_bf16_f32 v{O+i}, v{A}, v{A+1}')
        if i == 3 or i == 7:
            k(f'buffer_store_dwordx4 {v(O+i-3,4)}, v4, s[24:27], s{51+(i>>2)} offen')
    k(f'buffer_store_dwordx2 {v(O+8,2)}, v6, s[24:27], s53 offen')
    k(f'v_cmp_eq_u32 vcc, 3, v{VG}')
    k('s_cmp_eq_u32 s41, 3')
    k('s_cselect_b64 vcc, vcc, 0')
    k(f'v_cndmask_b32 v{ACC+19}, v{ACC+19}, 0, vcc')
    for tp in range(3):
        n = 8 if tp < 2 else 4
        k(f'v_mul_f32 v{10+tp}, v{ACC+8*tp}, v{ACC+8*tp}')
        for i in range(1, n):
            k(f'v_fmac_f32 v{10+tp}, v{ACC+8*tp+i}, v{ACC+8*tp+i}')
    k('s_bitcmp1_b32 s3, 0')
    k('s_cselect_b64 vcc, -1, 0')
    k('v_cndmask_b32 v13, v12, 0, vcc')
    k('v_cndmask_b32 v12, 0, v12, vcc')
    k('v_add_f32 v10, v10, v13')
    k('v_add_f32 v11, v11, v12')
    k(f'v_lshlrev_b32 v12, 6, v{VC}')
    k(f'v_lshl_add_u32 v12, v{VG}, 2, v12')
    k('s_lshl_b32 s54, s3, 4')
    k('s_add_u32 s54, s54, 36864')
    k('v_add_u32 v12, s54, v12')
    k('ds_write_b32 v12, v10')
    k('ds_write_b32 v12, v11 offset:1024')
    k('s_barrier')
    LE = k.newlabel('end')
    k('s_cmp_lg_u32 s3, 0')
    k(f's_cbranch_scc1 {LE}')
    k(f'v_and_b32 v12, 31, v{VL}')
    k('v_lshlrev_b32 v13, 6, v12')
    for q in range(4):
        k(f'ds_read_b128 {v(ACC+4*q,4)}, v13 offset:{36864+16*q}')
    for st in (8, 4, 2, 1):
        for i in range(st):
            k(f'v_add_f32 v{ACC+i}, v{ACC+i}, v{ACC+st+i}')
    k('v_lshlrev_b32 v12, 4, v12')
    k('s_lshl_b32 s54, s40, 9')
    k('s_lshl_b32 s55, s41, 2')
    k('s_add_u32 s54, s54, s55')
    k(f's_add_u32 s54, s54, {SS+LO}')
    k(f'buffer_store_dword v{ACC}, v12, s[24:27], s54 offen')
    k.label(LE)
    stamp_end(k, 0, 3)
    k('s_endpgm')
    return k
```

```python
from base import *
HALF = 32 * KVT
NT = 4
QF1, QF2, KB1, KB2, VB, P, S, O = 16, 24, 28, 36, 40, 56, 64, 96
AK1, AK2, AV, BK1, BK2, BV, MX0, MX1 = 128, 129, 130, 131, 132, 133, 134, 135
VQL, VOL, VXW, VXR = 136, 137, 138, 139
sQ0, sQ1, sKV, sHB, sLB, sOM, sOL, sMP, sG0, sG1, sIT, sW0, sW9, sW3 = range(68, 82)

def att_pre(k):
    k(f's_lshl_b32 s62, s{sX}, 2')
    k(f's_lshr_b32 s63, s{sI}, 3')
    k('s_add_u32 s62, s62, s63')
    k(f's_and_b32 s63, s{sI}, 7')
    k('s_lshl_b32 s63, s63, 3')
    k('s_and_b32 s64, s3, 3')
    k('s_lshr_b32 s65, s3, 2')
    k('s_lshl_b32 s66, s64, 1')
    k('s_add_u32 s63, s63, s66')
    k('s_add_u32 s63, s63, s65')
    k(f's_mul_i32 s66, s62, {KVH}')
    k(f's_add_u32 s66, s66, s{sLO}')
    k(f's_add_u32 s{sKV}, s66, {KV}')
    k(f's_add_u32 s66, s66, {QI}')
    k(f's_mul_i32 s{sQ0}, s63, {KVT}')
    k(f's_xor_b32 s{sQ1}, s63, 1')
    k(f's_mul_i32 s{sQ1}, s{sQ1}, {KVT}')
    k(f's_add_u32 s{sQ0}, s{sQ0}, s66')
    k(f's_add_u32 s{sQ1}, s{sQ1}, s66')
    k(f's_mul_i32 s{sHB}, s65, {HALF}')
    k(f's_lshl_b32 s{sLB}, s64, 10')
    k(f's_add_u32 s{sLB}, s{sLB}, s{sHB}')
    k(f's_lshl_b32 s{sOM}, s63, 15')
    k('s_lshl_b32 s66, s62, 10')
    k(f's_add_u32 s{sOM}, s{sOM}, s66')
    k(f's_add_u32 s{sOM}, s{sOM}, s{sLO}')
    k(f's_add_u32 s{sOM}, s{sOM}, {OM}')
    k(f's_lshl_b32 s{sOL}, s62, 13')
    k('s_lshl_b32 s66, s63, 7')
    k(f's_add_u32 s{sOL}, s{sOL}, s66')
    k(f's_add_u32 s{sOL}, s{sOL}, s{sLO}')
    k(f's_add_u32 s{sOL}, s{sOL}, {OL}')
    k(f's_lshl_b32 s62, s{sL}, 20')
    k(f's_mul_i32 s63, s{sCB}, {W9_CB}')
    k('s_add_u32 s62, s62, s63')
    k(f's_add_u32 s62, s62, {WOF}')
    k(f's_mul_i32 s{sW0}, s3, {W9_T}')
    k(f's_add_u32 s{sW0}, s{sW0}, s62')
    k(f's_add_u32 s62, s62, {8*W9_T}')
    k('s_lshl_b32 s63, s3, 11')
    k(f's_add_u32 s{sW9}, s62, s63')
    k('s_lshl_b32 s63, s3, 10')
    k('s_add_u32 s62, s62, s63')
    k('s_add_u32 s62, s62, 16384')
    k('s_cmp_lt_u32 s3, 2')
    k(f's_cselect_b32 s{sW3}, s62, {OOR}')
    k(f'v_and_b32 v5, 31, v{VL}')
    k(f'v_lshrrev_b32 v6, 5, v{VL}')
    k(f'v_add_u32 v{BK1}, s{sHB}, v{V16}')
    k('v_lshrrev_b32 v7, 4, v5')
    k('v_bfe_u32 v8, v5, 2, 1')
    k('v_lshl_add_u32 v7, v7, 1, v8')
    k(f'v_mul_u32_u24 v7, {GRP}, v7')
    k('v_and_b32 v8, 8, v5')
    k('v_and_b32 v9, 3, v5')
    k('v_lshl_add_u32 v8, v9, 1, v8')
    k(f's_mov_b32 s62, {1024+19*16}')
    k('v_add3_u32 v7, v7, v8, s62')
    k(f'v_lshl_add_u32 v{VQL}, v6, 4, v7')
    k(f'v_add_u32 v{BK2}, s{sHB}, v{VQL}')
    k('v_cmp_eq_u32 vcc, 4, v5')
    k('v_cndmask_b32 v7, v5, 18, vcc')
    k('v_cmp_lt_u32 vcc, 17, v5')
    k('v_cndmask_b32 v7, v7, 4, vcc')
    k('v_lshlrev_b32 v7, 4, v7')
    k(f'v_mul_u32_u24 v8, {GRP}, v6')
    k(f's_add_u32 s62, s{sHB}, 1024')
    k(f'v_add3_u32 v{BV}, v7, v8, s62')
    k('v_mov_b32 v7, 0x47ffff')
    k('v_lshrrev_b32 v7, v5, v7')
    k('v_and_b32 v7, 1, v7')
    k('v_cmp_eq_u32 vcc, 1, v7')
    k('v_mov_b32 v7, 0x100000')
    k(f'v_cndmask_b32 v{BV}, v7, v{BV}, vcc')
    k('v_lshlrev_b32 v7, 2, v5')
    k('v_or_b32 v8, v6, v9')
    k('v_cmp_eq_u32 vcc, 0, v8')
    k(f'v_mov_b32 v8, {OOR}')
    k(f'v_cndmask_b32 v{VOL}, v8, v7, vcc')
    k('s_mul_i32 s62, s3, 3072')
    k(f'v_add_u32 v{VXW}, s62, v{V16}')
    k('s_xor_b32 s62, s3, 4')
    k('s_mul_i32 s62, s62, 3072')
    k(f'v_add_u32 v{VXR}, s62, v{V16}')
    for b in range(2):
        k(f'v_mov_b32 v{KB2+2*b+1}, 0x3f803f80')
    k(f's_mov_b32 s{sMP}, 0')
    k(f's_mov_b32 s{sG0}, 0')
    k(f's_mov_b32 s{sG1}, 3')

def att_main(k):
    for qt in range(2):
        k(f'buffer_load_dwordx4 {v(QF1+4*qt,4)}, v{V16}, {WSR}, s{sQ0+qt} offen sc1')
    for n in range(19):
        if n == 0:
            k(f's_mov_b32 m0, s{sLB}')
        elif n < 18:
            k(f's_add_u32 m0, s{sLB}, {n*4096}')
        else:
            k('s_and_b32 s62, s3, 1')
            k('s_lshl_b32 s62, s62, 10')
            k(f's_add_u32 s62, s62, s{sHB}')
            k(f's_add_u32 m0, s62, {72*1024}')
        k(f's_add_u32 s62, s{sKV}, m0')
        k(f'buffer_load_dwordx4 v{V16}, {WSR}, s62 offen sc1 lds')
        if n == 1:
            for qt in range(2):
                k(f'buffer_load_ushort v{QF2+2*qt}, v{VQL}, {WSR}, s{sQ0+qt} offen sc1')
    RETRY = k.newlabel('retry')
    k.label(RETRY)
    for r in range(32):
        k(f'v_mov_b32 v{O+r}, 0')
    for r in range(4):
        k(f'v_mov_b32 v{P+4+r}, 0')
        k(f'v_mov_b32 v{VB+12+r}, 0')
    for qt in range(2):
        k(f'v_mov_b32 v{QF2+2*qt+1}, 0')
        k(f'v_mov_b32 v{MX0+qt}, 0xff800000')
    k(f'v_mov_b32 v{AK1}, v{BK1}')
    k(f'v_mov_b32 v{AK2}, v{BK2}')
    k(f'v_mov_b32 v{AV}, v{BV}')
    k(f's_mov_b32 s{sIT}, 0')
    L1 = k.newlabel('skipA')
    k(f's_cmp_lg_u32 s{sG0}, 0')
    k(f's_cbranch_scc1 {L1}')
    k('s_waitcnt vmcnt(17)')
    k('s_barrier')
    k.label(L1)
    stamp(k, 17)
    def qk(kb, qt):
        return [f'v_mfma_f32_32x32x16_bf16 {v(S+16*qt,16)}, {v(KB1+4*kb,4)}, {v(QF1+4*qt,4)}, 0',
                f'v_mfma_f32_32x32x8bf16_1k {v(S+16*qt,16)}, {v(KB2+2*kb,2)}, {v(QF2+2*qt,2)}, {v(S+16*qt,16)}']
    def rdk(kb, a1, a2, off):
        return [f'ds_read_b128 {v(KB1+4*kb,4)}, v{a1} offset:{off}',
                f'ds_read_u16 v{KB2+2*kb}, v{a2} offset:{off}']
    MP = k.newlabel('mp')
    k.label(MP)
    k(f'v_add_u32 v{P}, s{sMP}, v{BK1}')
    k(f'v_add_u32 v{P+1}, s{sMP}, v{BK2}')
    emit(k, rdk(0, P, P+1, 0))
    for sub in range(2):
        k(f'ds_read_b128 {v(VB+4*sub,4)}, v{BV} offset:{sub*2*GRP}')
    emit(k, rdk(1, BK1, BK2, KVT))
    a0, a1 = qk(0, 0), qk(0, 1)
    emit(k, [a0[0], a1[0], a0[1], a1[1]])
    for qt in range(2):
        for j in range(8):
            k(f'v_max3_f32 v{MX0+qt}, v{S+16*qt+2*j}, v{S+16*qt+2*j+1}, v{MX0+qt}')
    k(f's_sub_u32 s{sMP}, s{sMP}, {KVT}')
    k(f's_cbranch_scc0 {MP}')
    k(f'v_permlane32_swap_b32 v{MX0}, v{MX1}')
    k(f'v_max_f32 v{MX0}, v{MX0}, v{MX1}')
    k(f'v_xor_b32 v{P}, 0x80000000, v{MX0}')
    k(f'v_and_b32 v{P+1}, s{sHI}, v{P}')
    k(f'v_sub_f32 v{P}, v{P}, v{P+1}')
    k(f'v_and_b32 v{P+2}, s{sHI}, v{P}')
    k(f'v_sub_f32 v{P}, v{P}, v{P+2}')
    k(f'v_lshrrev_b32 v{P+1}, 16, v{P+1}')
    k(f'v_or_b32 v{QF2+1}, v{P+1}, v{P+2}')
    k(f'v_lshrrev_b32 v{QF2+3}, 16, v{P}')
    k(f'v_mov_b32 v{MX1}, v{MX0}')
    k(f'v_permlane32_swap_b32 v{QF2+1}, v{QF2+3}')
    k(f'v_permlane32_swap_b32 v{MX0}, v{MX1}')
    emit(k, a0)
    k(f'v_mov_b32 v{S+30}, 0')
    k(f'v_mov_b32 v{S+31}, 0')
    LOOP = k.newlabel('loop')
    stubs = []
    def site(cond, what):
        st, back = k.newlabel('stub'), k.newlabel('back')
        k(cond)
        k(f's_cbranch_scc1 {st}')
        k.label(back)
        stubs.append((st, back, what))
    E = lambda qt, j: f'v_exp_f32 v{S+16*qt+j}, v{S+16*qt+j}'
    C = lambda qt, j: f'v_cvt_pk_bf16_f32 v{P+j}, v{S+16*qt+2*j}, v{S+16*qt+2*j+1}'
    def pv(kb, sub, qt):
        return f'v_mfma_f32_32x32x16_bf16 {v(O+16*qt,16)}, {v(VB+8*kb+4*sub,4)}, {v(P+4*sub,4)}, {v(O+16*qt,16)}'
    LENT = k.newlabel('lent')
    stamp(k, 18)
    k('s_waitcnt lgkmcnt(0)')
    k('s_nop 8')
    k(f's_branch {LENT}')
    k.label(LOOP)
    site(f's_cmp_lt_u32 s{sIT}, s{sG1}', 'top')
    k.label(LENT)
    for u in range(2*NT):
        ktl, qt = u >> 1, u & 1
        if u == 3:
            site(f's_cmp_eq_u32 s{sIT}, s{sG0}', 3)
        if qt == 0:
            nb = (ktl + 1) & 1
            rds = [f'ds_read_b128 {v(VB+8*nb+4*sub,4)}, v{AV} offset:{(ktl+1)*KVT+sub*2*GRP}' for sub in range(2)]
            adds = [f'v_add_u32 v{AV}, {NT*KVT}, v{AV}']
        else:
            rds = rdk(ktl & 1, AK1, AK2, (ktl+2)*KVT)
            adds = [f'v_add_u32 v{AK1}, {NT*KVT}, v{AK1}', f'v_add_u32 v{AK2}, {NT*KVT}, v{AK2}']
        if ktl != NT - 1:
            adds = []
        q = qk(((u + 1) >> 1) & 1, (u + 1) & 1)
        b_ = pv(((u-1) >> 1) & 1, 1, qt ^ 1)
        a_ = pv(ktl & 1, 0, qt)
        seq = [E(qt,0), E(qt,1), C(qt^1,7),
               E(qt,2), q[0], rds[0], E(qt,3), C(qt,0),
               E(qt,4), b_, E(qt,5), C(qt,1),
               E(qt,6), E(qt,7), C(qt,2),
               E(qt,8), q[1], rds[1], E(qt,9), C(qt,3),
               E(qt,10), E(qt,11), C(qt,4),
               E(qt,12), a_, 's_waitcnt lgkmcnt(2)', E(qt,13), C(qt,5)] + adds + \
              [E(qt,14), E(qt,15), C(qt,6)]
        seq = [x for x in seq if x]
        if u == 2*NT - 1:
            seq.insert(len(seq) - 3, f's_add_u32 s{sIT}, s{sIT}, 1')
            seq.insert(len(seq) - 1, f's_cmp_lt_u32 s{sIT}, {32 // NT}')
        emit(k, seq)
    k(f's_cbranch_scc1 {LOOP}')
    k(C(1, 7))
    k(pv((NT-1) & 1, 1, 1))
    stamp(k, 19)
    k(f's_mov_b32 s62, {fl(2.0**40)}')
    k(f'v_add_f32 v{P+1}, v{O+10}, v{O+26}')
    k(f'v_cmp_nlt_f32 vcc, v{P+1}, s62')
    OKL = k.newlabel('ok')
    k(f's_cbranch_vccz {OKL}')
    k(f's_cmp_lg_u32 s{sG0}, 0')
    k(f's_cbranch_scc1 {OKL}')
    k(f's_mov_b32 s{sMP}, {31*KVT}')
    k(f's_mov_b32 s{sG0}, 99')
    k(f's_mov_b32 s{sG1}, 0')
    k(f's_branch {RETRY}')
    for st, back, what in stubs:
        k.label(st)
        if what == 'top':
            l2 = k.newlabel('w9')
            k(f's_cmp_eq_u32 s{sIT}, 1')
            k(f's_cbranch_scc1 {l2}')
            k('s_waitcnt vmcnt(0)')
            k('s_barrier').nobarwait = True
            for ks in range(18):
                k(f'buffer_load_dwordx4 {v(B+4*ks,4)}, v{V16}, {WSR}, s{sW0} offen offset:{(ks&3)*1024} sc1')
                if ks & 3 == 3:
                    k(f's_add_u32 s{sW0}, s{sW0}, 4096')
            for m in range(2):
                k(f'buffer_load_dwordx4 {v(B9+4*m,4)}, v{V16}, {WSR}, s{sW9} offen offset:{m*1024} sc1')
            k(f'buffer_load_dwordx4 {v(B9+8,4)}, v{V16}, {WSR}, s{sW3} offen sc1')
            k(f's_branch {back}')
            k.label(l2)
            k(f's_waitcnt vmcnt({18-9})')
        else:
            k(f's_waitcnt vmcnt({18-what})')
        k('s_barrier').nobarwait = True
        k(f's_branch {back}')
    k.label(OKL)
    k(f'v_mov_b32 v{O+16+11}, v{MX1}')
    k('s_barrier')
    for j in range(3):
        k(f'ds_write_b128 v{VXW}, {v(O+16+4*j,4)} offset:{j*1024}')
    k('s_barrier')
    X = S
    for j in (2, 0, 1):
        k(f'ds_read_b128 {v(X+4*j,4)}, v{VXR} offset:{j*1024}')
    k(f'v_max_f32 v{P}, v{MX0}, v{X+11}')
    k(f'v_sub_f32 v{P+1}, v{MX0}, v{P}')
    k(f'v_sub_f32 v{P+2}, v{X+11}, v{P}')
    k(f'v_exp_f32 v{P+1}, v{P+1}')
    k(f'v_exp_f32 v{P+2}, v{P+2}')
    k(f'v_mul_f32 v{P}, v{P+1}, v{O+10}')
    k(f'v_fmac_f32 v{P}, v{P+2}, v{X+10}')
    k(f'v_rcp_f32 v{P}, v{P}')
    k(f'v_mul_f32 v{P+1}, v{P+1}, v{P}')
    k(f'v_mul_f32 v{P+2}, v{P+2}, v{P}')
    for j in (8, 9, 0, 1, 2, 3, 4, 5, 6, 7):
        k(f'v_mul_f32 v{O+j}, v{P+1}, v{O+j}')
        k(f'v_fmac_f32 v{O+j}, v{P+2}, v{X+j}')
        if j == 9:
            k(f'v_cvt_pk_bf16_f32 v{VB}, v{O+8}, v{O+9}')
        if j in (1, 2, 3):
            k(f'v_mov_b32_dpp v{VB+j}, v{VB} quad_perm:[{j},{j},{j},{j}] row_mask:0xf bank_mask:0xf')
        if j == 3:
            k(f'buffer_store_dwordx4 {v(VB,4)}, v{VOL}, {WSR}, s{sOL} offen sc1')
    for j in range(4):
        k(f'v_cvt_pk_bf16_f32 v{P+4+j}, v{O+2*j}, v{O+2*j+1}')
    k(f'buffer_store_dwordx4 {v(P+4,4)}, v{V16}, {WSR}, s{sOM} offen sc1')
```

```python
import sys, os, struct
sys.path.insert(0, 'exp2')
from asmlib import *
from lay import *

STOP = int(os.environ.get('STOP', 99))
INSTR = bool(os.environ.get('INSTR'))
OOR = 0x40000000
POLLMAX = 20000

def f2u(x):
    return struct.unpack('<I', struct.pack('<f', x))[0]
def fl(x):
    return f'0x{f2u(x):08x}'
def srd(k, d, base, nbytes):
    k(f's_mov_b32 s{d}, s{base}')
    k(f's_mov_b32 s{d+1}, s{base+1}')
    k(f's_mov_b32 s{d+2}, {nbytes}')
    k(f's_mov_b32 s{d+3}, 0x00020000')
def inter(main, *fills):
    out = []
    n = len(main)
    idx = [0] * len(fills)
    for t in range(n):
        out.append(main[t])
        for j, l in enumerate(fills):
            want = (t + 1) * len(l) // n
            while idx[j] < want:
                out.append(l[idx[j]]); idx[j] += 1
    return out
def emit(k, lst):
    for x in lst:
        k(x)

sW = 3
WSR = 's[24:27]'
sX, sI, sFV, sL, sRB, sCB, sQ, sH = 40, 41, 42, 43, 44, 45, 46, 47
sXI, sLO, sFL, sSSO = 48, 49, 50, 51
sSA, sSG, sS3, sS4, sPA, sPG = 52, 53, 54, 55, 56, 57
sM576, sI576, sHI = 58, 59, 39
sHI = 60
sST = 61
VL, VC, VG, V16 = 1, 2, 3, 4
ACC, ACC9, B, B9, WV = 144, 152, 160, 232, 244
PART, PSTR = 36864, 4112
SSL = PART + 8 * PSTR
AUX = 74240
LDS = 65 * KVT

def stamp(k, i):
    if INSTR:
        k('s_memrealtime s[94:95]')
        k(f's_add_u32 m0, s{sST}, {i}')
        k('v_writelane_b32 v255, s94, m0')

def finish(k):
    if INSTR:
        k('s_mov_b64 exec, -1')
        k('s_lshl_b32 s62, s2, 3')
        k('s_add_u32 s62, s62, s3')
        k('s_lshl_b32 s62, s62, 8')
        k(f's_add_u32 s62, s62, {STAMP}')
        k(f'v_lshlrev_b32 v12, 2, v{VL}')
        k(f'buffer_store_dword v255, v12, {WSR}, s62 offen')
    k('s_endpgm')

def signal(k, sync, sslot, nrep, vm=0, mid=None):
    k(f's_waitcnt vmcnt({vm})')
    k('s_barrier')
    L = k.newlabel('sig')
    k('s_cmp_lg_u32 s3, 7')
    k(f's_cbranch_scc1 {L}')
    k(f's_add_u32 s62, s{sFL}, s{sslot}')
    k(f'v_lshlrev_b32 v12, 12, v{VL}')
    k(f'v_mov_b32 v13, s{sFV}')
    if sync:
        k(f's_add_u32 s62, s62, {sync*FLS}')
    k(f's_mov_b64 exec, {(1 << nrep) - 1 if nrep < 7 else hex((1 << nrep) - 1)}')
    k(f'buffer_store_dword v13, v12, {WSR}, s62 offen sc1')
    k('s_mov_b64 exec, -1')
    k.label(L)

def wait(k, sync, spoll, nlanes):
    L, LP, LD = k.newlabel('wsk'), k.newlabel('wlp'), k.newlabel('wdn')
    k('s_cmp_lg_u32 s3, 7')
    k(f's_cbranch_scc1 {L}')
    k(f's_add_u32 s62, s{sFL}, s{spoll}')
    if sync:
        k(f's_add_u32 s62, s62, {sync*FLS}')
    k(f'v_lshlrev_b32 v11, 6, v{VL}')
    if nlanes < 64:
        k(f's_mov_b64 exec, {hex((1 << nlanes) - 1)}')
    k('s_mov_b32 s63, 0')
    k.label(LP)
    k(f'buffer_load_dwordx4 v[12:15], v11, {WSR}, s62 offen sc1')
    k('s_add_u32 s63, s63, 1')
    k(f'v_xor_b32 v12, s{sFV}, v12')
    k(f'v_xor_b32 v13, s{sFV}, v13')
    k(f'v_xor_b32 v14, s{sFV}, v14')
    k(f'v_xor_b32 v15, s{sFV}, v15')
    k('v_or3_b32 v12, v12, v13, v14')
    k('v_or_b32 v12, v12, v15')
    k('v_cmp_ne_u32 vcc, 0, v12')
    k(f's_cbranch_vccz {LD}')
    k(f's_cmp_lt_u32 s63, {POLLMAX}')
    k(f's_cbranch_scc1 {LP}')
    k.label(LD)
    k('s_mov_b64 exec, -1')
    k.label(L)
    k('s_barrier')

def reduce_angle(k, vd, vm, vt):
    k(f'v_cvt_f32_u32 v{vd}, v{vm}')
    k(f'v_mul_f32 v{vt}, s{sI576}, v{vd}')
    k(f'v_floor_f32 v{vt}, v{vt}')
    k(f'v_fma_f32 v{vd}, v{vt}, s{sM576}, v{vd}')

def dpp_add(r, ctrl, mask='row_mask:0xf'):
    return f'v_add_f32_dpp v{r}, v{r}, v{r} {ctrl} {mask} bank_mask:0xf'
RED8 = ('quad_perm:[1,0,3,2]', 'quad_perm:[2,3,0,1]', 'row_half_mirror')
```

```python
from base import *
RS = 272
XV, SSV, AF, CA, TC, TS, CB, Y = 16, 24, 24, 56, 88, 96, 104, 128
WR_, WI_, PR, PI, T0, XU = 144, 152, 160, 164, 168, 176
TMP = Y
C = [CB, CB+12]; S_ = [CB+4, CB+16]; NS = [CB+8, CB+20]

def fft_consts(k):
    L = k.newlabel('wrd')
    k(f's_cmp_lg_u32 s{sL}, 0')
    k(f's_cbranch_scc1 {L}')
    k('s_lshl_b32 s62, s3, 11')
    k(f's_add_u32 s62, s62, {AUX}')
    k(f'v_add_u32 v5, s62, v{V16}')
    k(f'ds_read_b128 {v(WV,4)}, v5')
    k(f'ds_read_b128 {v(WV+4,4)}, v5 offset:1024')
    k.label(L)
    k('s_and_b32 s62, s3, 3')
    k('s_lshr_b32 s63, s3, 2')
    k('s_lshl_b32 s64, s62, 4')
    k(f'v_add_u32 v9, s64, v{VC}')
    k(f'v_mul_u32_u24 v7, {4*RS}, v{VG}')
    k('v_lshl_add_u32 v7, v9, 2, v7')
    k(f'v_mul_u32_u24 v8, {RS}, v{VC}')
    k(f'v_lshl_add_u32 v8, v{VG}, 4, v8')
    k(f's_mul_i32 s64, s63, {16*RS}')
    k('v_add_u32 v7, s64, v7')
    k('v_add_u32 v8, s64, v8')
    k('v_add_u32 v5, s64, v7')
    k('v_add_u32 v6, s64, v8')
    k(f's_lshl_b32 s64, s{sQ}, 14')
    k(f's_add_u32 s64, s64, s{sXI}')
    k('s_lshl_b32 s65, s63, 13')
    k('s_add_u32 s64, s64, s65')
    k('s_lshl_b32 s65, s62, 8')
    k('s_add_u32 s64, s64, s65')
    k(f's_add_u32 s65, s64, {XSZ}')
    k('s_lshl_b32 s68, s63, 12')
    k(f's_add_u32 s68, s68, s{sSSO}')
    k('s_lshl_b32 s62, s62, 7')
    k('s_add_u32 s68, s68, s62')
    for c in range(1, 4):
        k(f's_add_u32 s{68+c}, s68, {c*8192}')
    k(f's_cmp_eq_u32 s{sQ}, 143')
    k('s_cselect_b32 s66, 0, 1.0')
    k('v_cvt_f32_u32 v9, v9')
    k(f'v_lshlrev_b32 v10, 2, v{VG}')
    k('v_cvt_f32_u32 v10, v10')
    k(f'v_mul_f32 v11, {fl(1/64)}, v9')
    k('v_mul_f32 v12, v11, v10')
    for ks in range(4):
        for e in range(4):
            n = 16*ks + e
            if n == 0:
                k(f'v_mov_b32 v{TMP}, v12')
            else:
                k(f'v_fmamk_f32 v{TMP+e}, v11, {fl(float(n))}, v12')
        for e in range(4):
            k(f'v_sin_f32 v{TMP+4+e}, v{TMP+e}')
            k(f'v_cos_f32 v{TMP+e}, v{TMP+e}')
        for e in range(4):
            k(f'v_cvt_pk_bf16_f32 v{CA+ks*8+e}, v{TMP+e}, v{TMP+4+e}')
            k(f'v_cvt_pk_bf16_f32 v{CA+ks*8+4+e}, -v{TMP+4+e}, v{TMP+e}')
    k(f'v_mul_f32 v11, {fl(1/2048)}, v9')
    k('v_mul_f32 v12, v11, v10')
    for i in range(8):
        n = 16*(i >> 2) + (i & 3)
        if n == 0:
            k(f'v_mov_b32 v{TC}, v12')
        else:
            k(f'v_fmamk_f32 v{TC+i}, v11, {fl(float(n))}, v12')
    for i in range(8):
        k(f'v_sin_f32 v{TS+i}, v{TC+i}')
        k(f'v_cos_f32 v{TC+i}, v{TC+i}')
    k(f'v_cvt_f32_u32 v9, v{VC}')
    k(f'v_mul_f32 v11, {fl(1/32)}, v9')
    k('v_mul_f32 v12, v11, v10')
    for i in range(8):
        n = 16*(i >> 2) + (i & 3)
        if n == 0:
            k(f'v_mov_b32 v{TMP}, v12')
        else:
            k(f'v_fmamk_f32 v{TMP+i}, v11, {fl(float(n))}, v12')
    for i in range(8):
        k(f'v_sin_f32 v{TMP+8+i}, v{TMP+i}')
        k(f'v_cos_f32 v{TMP+i}, v{TMP+i}')
    for q in range(4):
        k(f'v_cvt_pk_bf16_f32 v{C[0]+q}, v{TMP+2*q}, v{TMP+2*q+1}')
        k(f'v_cvt_pk_bf16_f32 v{C[1]+q}, v{TMP+2*q}, -v{TMP+2*q+1}')
        k(f'v_cvt_pk_bf16_f32 v{S_[0]+q}, v{TMP+8+2*q}, v{TMP+9+2*q}')
        k(f'v_cvt_pk_bf16_f32 v{S_[1]+q}, v{TMP+8+2*q}, -v{TMP+9+2*q}')
        k(f'v_cvt_pk_bf16_f32 v{NS[0]+q}, -v{TMP+8+2*q}, -v{TMP+9+2*q}')
        k(f'v_cvt_pk_bf16_f32 v{NS[1]+q}, -v{TMP+8+2*q}, v{TMP+9+2*q}')
    for i in range(8):
        k(f'v_lshlrev_b32 v{WR_+i}, 16, v{WV+i}')
        k(f'v_and_b32 v{WI_+i}, s{sHI}, v{WV+i}')
    k(f'v_lshlrev_b32 v10, 3, v{VC}')
    k(f'v_lshl_add_u32 v10, v{VG}, 10, v10')
    k('v_lshlrev_b32 v9, 1, v10')
    k(f's_mov_b32 s72, {fl(4194304.0/576)}')
    k(f'v_mov_b32 v{T0+4}, {fl(1e-5*4194304.0)}')

def fft_main(k):
    for h in range(2):
        for c in range(4):
            k(f'buffer_load_dwordx2 {v(SSV+8*h+2*c,2)}, v10, {WSR}, s{68+c} offen offset:{h*512} sc1')
        k(f'buffer_load_dwordx4 {v(XV+4*h,4)}, v9, {WSR}, s64 offen offset:{h*1024} sc1')
    for h in range(2):
        b = SSV + 8*h
        k(f'v_pk_add_f32 {v(b,2)}, {v(b,2)}, {v(b+2,2)}')
        k(f'v_pk_add_f32 {v(b+4,2)}, {v(b+4,2)}, {v(b+6,2)}')
        k(f'v_pk_add_f32 {v(b,2)}, {v(b,2)}, {v(b+4,2)}')
        for p in range(2):
            k(f'v_fma_f32 v{b+p}, v{b+p}, s72, v{T0+4}')
        for p in range(2):
            k(f'v_rsq_f32 v{b+2+2*p}, v{b+p}')
        for p in range(2):
            r = 2*h + p
            for col in range(2):
                x = XU + 4*r + 2*col
                k(f'v_lshlrev_b32 v{x}, 16, v{XV+2*r+col}')
                k(f'v_and_b32 v{x+1}, s{sHI}, v{XV+2*r+col}')
            k(f'v_mul_f32 v{b+3+2*p}, s66, v{b+2+2*p}')
            t = 40 + 4*r
            k(f'v_pk_mul_f32 {v(t,2)}, {v(XU+4*r,2)}, {v(b+2+2*p,2)} op_sel_hi:[1,0]')
            k(f'v_pk_mul_f32 {v(t+2,2)}, {v(XU+4*r+2,2)}, {v(b+2+2*p,2)}')
            for col in range(2):
                k(f'v_cvt_pk_bf16_f32 v{t+2*col}, v{t+2*col}, v{t+2*col+1}')
                k(f'ds_write_b32 v7, v{t+2*col} offset:{col*8704 + r*RS}')
    k('s_barrier')
    stamp(k, 6)
    YR, YI = Y, Y + 8
    def stageA(va, base, st):
        for ks in range(4):
            for a_ in range(2):
                k(f'ds_read_b128 {v(AF+(ks*2+a_)*4,4)}, v{va} offset:{base + a_*st + ks*64}')
        for ks in range(4):
            for a_ in range(2):
                for c_, YY in ((0, YR), (1, YI)):
                    Cop = '0' if ks == 0 else v(YY+4*a_, 4)
                    k(f'v_mfma_f32_16x16x32_bf16 {v(YY+4*a_,4)}, {v(AF+(ks*2+a_)*4,4)}, {v(CA+ks*8+4*c_,4)}, {Cop}')
    stageA(6, 0, 16*RS)
    def cmul(cr, ci, sgn, pack):
        for h in range(4):
            i = 2*h
            k(f'v_pk_mul_f32 {v(T0,2)}, {v(YI+i,2)}, {v(ci+i,2)}')
            k(f'v_pk_mul_f32 {v(T0+2,2)}, {v(YR+i,2)}, {v(ci+i,2)}')
            ng = ' neg_lo:[0,0,1] neg_hi:[0,0,1]'
            k(f'v_pk_fma_f32 {v(YR+i,2)}, {v(YR+i,2)}, {v(cr+i,2)}, {v(T0,2)}' + (ng if sgn > 0 else ''))
            k(f'v_pk_fma_f32 {v(YI+i,2)}, {v(YI+i,2)}, {v(cr+i,2)}, {v(T0+2,2)}' + ('' if sgn > 0 else ng))
            pack(h)
    def packB(h):
        k(f'v_cvt_pk_bf16_f32 v{PR+h}, v{YR+2*h}, v{YR+2*h+1}')
        k(f'v_cvt_pk_bf16_f32 v{PI+h}, v{YI+2*h}, v{YI+2*h+1}')
    def stageB(Sa, Sb):
        for a_ in range(2):
            k(f'v_mfma_f32_16x16x32_bf16 {v(YR+4*a_,4)}, {v(C[a_],4)}, {v(PR,4)}, 0')
            k(f'v_mfma_f32_16x16x32_bf16 {v(YI+4*a_,4)}, {v(C[a_],4)}, {v(PI,4)}, 0')
        for a_ in range(2):
            k(f'v_mfma_f32_16x16x32_bf16 {v(YR+4*a_,4)}, {v(Sa[a_],4)}, {v(PI,4)}, {v(YR+4*a_,4)}')
            k(f'v_mfma_f32_16x16x32_bf16 {v(YI+4*a_,4)}, {v(Sb[a_],4)}, {v(PR,4)}, {v(YI+4*a_,4)}')
    cmul(TC, TS, -1, packB)
    stageB(S_, NS)
    cmul(WR_, WI_, +1, packB)
    stageB(NS, S_)
    def packL(h):
        for e in range(2):
            i = 2*h + e
            k(f'v_cvt_pk_bf16_f32 v{PR+i}, v{YR+i}, -v{YI+i}')
            k(f'ds_write_b32 v5, v{PR+i} offset:{17408 + (16*(i>>2)+(i&3))*RS}')
    cmul(TC, TS, +1, packL)
    k('s_barrier')
    stamp(k, 7)
    stageA(8, 17408, 8704)
    for h in range(2):
        for p in range(2):
            r = 2*h + p
            for col in range(2):
                x = XU + 4*r + 2*col
                k(f'v_add_f32 v{x}, v{x}, v{YR+4*col+r}')
                if col == 0:
                    k(f'v_sub_f32 v{x+1}, v{x+1}, v{YI+r}')
                else:
                    k(f'v_fma_f32 v{x+1}, -v{YI+4+r}, s66, v{x+1}')
                k(f'v_cvt_pk_bf16_f32 v{XV+2*r+col}, v{x}, v{x+1}')
        k(f'buffer_store_dwordx4 {v(XV+4*h,4)}, v9, {WSR}, s65 offen offset:{h*1024} sc1')
```

```python
from base import *

def jparams(k, vj, vk, vph, vamp):
    k(f'v_lshrrev_b32 v{vk}, 1, v{vj}')
    k(f'v_add_u32 v{vk}, 1, v{vk}')
    k(f'v_and_b32 v{vph}, 1, v{vj}')
    k(f'v_cvt_f32_u32 v{vph}, v{vph}')
    k(f'v_mul_f32 v{vph}, 0x3e800000, v{vph}')
    k(f'v_cmp_eq_u32 vcc, 0x23f, v{vj}')
    k(f'v_cndmask_b32 v{vk}, v{vk}, 0, vcc')
    k(f'v_cndmask_b32 v{vph}, v{vph}, 0, vcc')
    k(f'v_mov_b32 v{vamp}, {fl(C_AMP)}')
    k(f'v_mov_b32 v{vamp+1}, {fl(1/24)}')
    k(f'v_cmp_lt_u32 vcc, 0x23d, v{vj}')
    k(f'v_cndmask_b32 v{vamp}, v{vamp}, v{vamp+1}, vcc')

def seed8(k, T, vn0, vk, vkf, vph, vamp, vt):
    k(f'v_mul_u32_u24 v{vt}, v{vn0}, v{vk}')
    reduce_angle(k, T, vt, vt + 1)
    k(f'v_fma_f32 v{T}, v{T}, s{sI576}, v{vph}')
    for e in range(1, 8):
        k(f'v_fmamk_f32 v{T+e}, v{vkf}, {fl(float(e))}, v{T}')
    for e in range(8):
        k(f'v_cos_f32 v{T+e}, v{T+e}')
    for e in range(0, 8, 2):
        k(f'v_pk_mul_f32 {v(T+e,2)}, {v(T+e,2)}, {v(vamp,2)} op_sel_hi:[1,0]')

def pack8(k, D, T):
    for q in range(4):
        k(f'v_cvt_pk_bf16_f32 v{D+q}, v{T+2*q}, v{T+2*q+1}')

def fgen(k):
    J, K_, PH, KF, AM, N0, TT, D2 = 16, 17, 18, 19, 20, 22, 24, 26
    S0, S1 = 32, 40
    k(f's_mul_i32 s62, s{sCB}, 144')
    k('s_lshl_b32 s63, s3, 4')
    k('s_add_u32 s63, s63, s62')
    k(f'v_add_u32 v{J}, s63, v{VC}')
    jparams(k, J, K_, PH, AM)
    k(f'v_cvt_f32_u32 v{KF}, v{K_}')
    k(f'v_mul_f32 v{KF}, s{sI576}, v{KF}')
    k(f'v_lshlrev_b32 v{N0}, 3, v{VG}')
    k(f'v_lshlrev_b32 v{TT}, 5, v{K_}')
    reduce_angle(k, D2, TT, TT + 1)
    k(f'v_mul_f32 v{D2}, s{sI576}, v{D2}')
    k(f'v_cos_f32 v{D2}, v{D2}')
    seed8(k, S0, N0, K_, KF, PH, AM, TT)
    k(f'v_add_f32 v{D2}, v{D2}, v{D2}')
    k(f'v_add_u32 v{N0}, 32, v{N0}')
    seed8(k, S1, N0, K_, KF, PH, AM, TT)
    pack8(k, B, S0)
    pack8(k, B + 4, S1)
    for ks in range(2, 18):
        p, c_ = (S0, S1) if ks % 2 == 0 else (S1, S0)
        for e in range(0, 8, 2):
            k(f'v_pk_fma_f32 {v(p+e,2)}, {v(c_+e,2)}, {v(D2,2)}, {v(p+e,2)} op_sel_hi:[1,0,1] neg_lo:[0,0,1] neg_hi:[0,0,1]')
        pack8(k, B + 4*ks, p)
    k('s_add_u32 s62, s62, 128')
    k(f'v_add_u32 v{J}, s62, v{VC}')
    jparams(k, J, K_, PH, AM)
    k(f'v_cvt_f32_u32 v{KF}, v{K_}')
    k(f'v_mul_f32 v{KF}, s{sI576}, v{KF}')
    k('s_lshl_b32 s62, s3, 6')
    k(f'v_lshl_add_u32 v{N0}, v{VG}, 3, s62')
    seed8(k, S0, N0, K_, KF, PH, AM, TT)
    k(f'v_add_u32 v{N0}, 32, v{N0}')
    seed8(k, S1, N0, K_, KF, PH, AM, TT)
    pack8(k, B9, S0)
    pack8(k, B9 + 4, S1)
    k('s_and_b32 s62, s3, 1')
    k('s_lshl_b32 s62, s62, 5')
    k('s_add_u32 s62, s62, 512')
    k(f'v_lshl_add_u32 v{N0}, v{VG}, 3, s62')
    k('s_cmp_lt_u32 s3, 2')
    k('s_cselect_b32 s62, 1.0, 0')
    k(f'v_mul_f32 v{AM}, s62, v{AM}')
    seed8(k, S0, N0, K_, KF, PH, AM, TT)
    pack8(k, B9 + 8, S0)

AF, A9 = 16, 48

def core_addr(k):
    k('s_lshl_b32 s62, s3, 12')
    k(f'v_add_u32 v5, s62, v{V16}')
    k('s_and_b32 s62, s3, 1')
    k('s_lshl_b32 s62, s62, 11')
    k('s_add_u32 s62, s62, 32768')
    k(f'v_add_u32 v6, s62, v{V16}')
    k(f's_mul_i32 s62, s3, {PSTR}')
    k(f's_add_u32 s62, s62, {PART}')
    k(f'v_add_u32 v7, s62, v{V16}')

def core_main(k, swapped=False):
    def mf(D, b, a):
        x, y = (a, b) if swapped else (b, a)
        return f'v_mfma_f32_16x16x32_bf16 {v(D,4)}, {v(x,4)}, {v(y,4)}, {v(D,4)}'
    def rd(ks):
        return [f'ds_read_b128 {v(AF+(ks&3)*8+4*tp,4)}, v{V16} offset:{ks*2048+tp*1024}' for tp in range(2)]
    for m in range(3):
        for tp in range(2):
            k(f'ds_read_b128 {v(A9+m*8+tp*4,4)}, v{5 if m < 2 else 6} offset:{(m&1)*2048*(m<2)+tp*1024}')
    for ks in range(3):
        emit(k, rd(ks))
    for m in range(3):
        for tp in range(2):
            k(mf(ACC9+4*tp, B9+4*m, A9+m*8+tp*4))
    for ks in range(18):
        r = rd(ks + 3) if ks + 3 < 18 else []
        if ks == 3:
            r = r + [f'ds_write_b128 v7, {v(ACC9+4*tp,4)} offset:{tp*1024}' for tp in range(2)]
        emit(k, inter([mf(ACC+4*tp, B+4*ks, AF+(ks&3)*8+4*tp) for tp in range(2)], r))

def red_read(k, R, va, off2, off1=0):
    k(f'ds_read_b128 {v(R,4)}, v{va} offset:{off1}')
    k(f'ds_read_b128 {v(R+4,4)}, v{va} offset:{off1+off2}')

def red8(k, regs):
    for ctrl in RED8:
        for r in regs:
            k(dpp_add(r, ctrl))

def epi_x_addr(k):
    k(f'v_lshlrev_b32 v8, 4, v{VC}')
    k(f'v_lshl_add_u32 v8, v{VG}, 14, v8')
    k(f'v_lshl_add_u32 v9, v{VC}, 2, v{VG}')
    k('s_lshl_b32 s62, s3, 3')
    k(f's_add_u32 s62, s62, {SSL}')
    k('v_lshl_add_u32 v9, v9, 6, s62')
    k(f's_mul_i32 s64, s{sCB}, {36*16384}')
    k(f's_lshl_b32 s65, s{sRB}, 8')
    k('s_add_u32 s64, s64, s65')
    k(f's_add_u32 s64, s64, s{sXI}')
    k('s_lshl_b32 s65, s3, 5')
    k('s_add_u32 s65, s65, s64')
    k(f's_add_u32 s65, s65, {32*16384}')
    k('s_lshl_b32 s62, s3, 16')
    k('s_add_u32 s64, s64, s62')
    k(f's_lshl_b32 s66, s{sCB}, 13')
    k(f's_lshl_b32 s62, s{sRB}, 7')
    k('s_add_u32 s66, s66, s62')
    k('s_lshl_b32 s62, s3, 4')
    k('s_add_u32 s66, s66, s62')
    k(f's_add_u32 s66, s66, s{sSSO}')

def epi_x(k, pre_barrier=None):
    T, R = 16, 24
    pack8(k, T, ACC)
    k(f'buffer_store_dwordx4 {v(T,4)}, v8, {WSR}, s64 offen sc1')
    for tp in range(2):
        k(f'v_mul_f32 v{20+tp}, v{ACC+4*tp}, v{ACC+4*tp}')
    for r in range(1, 4):
        for tp in range(2):
            k(f'v_fmac_f32 v{20+tp}, v{ACC+4*tp+r}, v{ACC+4*tp+r}')
    k('ds_write_b64 v9, v[20:21]')
    k(f'v_and_b32 v5, 7, v{VL}')
    k(f'v_mul_u32_u24 v10, {PSTR}, v5')
    k(f'v_bfe_u32 v6, v{VL}, 3, 2')
    k('v_lshl_add_u32 v10, v6, 8, v10')
    k(f'v_lshrrev_b32 v7, 5, v{VL}')
    k('v_lshl_add_u32 v10, v7, 4, v10')
    k('s_lshl_b32 s62, s3, 5')
    k(f's_add_u32 s62, s62, {PART}')
    k('v_add_u32 v10, s62, v10')
    k('s_lshl_b32 s62, s3, 9')
    k(f's_add_u32 s62, s62, {SSL}')
    k(f'v_lshl_add_u32 v9, v{VL}, 3, s62')
    k('v_lshlrev_b32 v8, 14, v6')
    k('v_lshl_add_u32 v8, v7, 4, v8')
    k('v_cmp_eq_u32 vcc, 0, v5')
    k(f'v_mov_b32 v5, {OOR}')
    k('v_cndmask_b32 v8, v5, v8, vcc')
    k(f'v_and_b32 v22, 31, v{VL}')
    k('v_lshlrev_b32 v7, 3, v7')
    k('v_cmp_eq_u32 vcc, 16, v22')
    k('v_cndmask_b32 v7, v5, v7, vcc')
    k('v_cmp_eq_u32 vcc, 3, v6')
    k(f's_cmp_eq_u32 s{sCB}, 3')
    k('s_cselect_b64 vcc, vcc, 0')
    k('v_cndmask_b32 v6, 1.0, 0, vcc')
    if pre_barrier:
        pre_barrier(k)
    k('s_barrier')
    red_read(k, R, 10, 1024)
    k(f'ds_read_b64 {v(R+8,2)}, v9')
    red8(k, range(R, R + 10))
    pack8(k, T + 4, R)
    k(f'buffer_store_dwordx4 {v(T+4,4)}, v8, {WSR}, s65 offen sc1')
    for tp in range(2):
        k(f'v_mul_f32 v{R+4*tp+3}, v6, v{R+4*tp+3}')
    for r in range(4):
        for tp in range(2):
            k(f'v_fmac_f32 v{R+8+tp}, v{R+4*tp+r}, v{R+4*tp+r}')
    for tp in range(2):
        k(dpp_add(R+8+tp, 'row_mirror'))
    for tp in range(2):
        k(dpp_add(R+8+tp, 'row_bcast:15', 'row_mask:0xa'))
    k(f'buffer_store_dwordx2 {v(R+8,2)}, v7, {WSR}, s66 offen sc1')
```

```python
from base import *
from g144 import *

def gw_dest(k, vd, vm, t):
    k(f'v_mul_u32_u24 v{t}, 0xe39, v{vm}')
    k(f'v_lshrrev_b32 v{t}, 16, v{t}')
    k(f'v_mul_u32_u24 v{t+1}, 18, v{t}')
    k(f'v_sub_u32 v{t+1}, v{vm}, v{t+1}')
    k(f'v_lshrrev_b32 v{t+2}, 2, v{t}')
    k(f'v_mul_u32_u24 v{vd}, {GW_CB}, v{t+2}')
    k(f'v_lshl_add_u32 v{vd}, v{t+1}, 4, v{vd}')
    k(f'v_bfe_u32 v{t+2}, v{t}, 1, 1')
    k(f'v_mul_u32_u24 v{t+2}, {GW_PT}, v{t+2}')
    k(f'v_and_b32 v{t+3}, 1, v{t}')
    k(f'v_lshl_add_u32 v{t+2}, v{t+3}, 8, v{t+2}')
    k(f'v_add_u32 v{t+2}, s69, v{t+2}')
    k(f'v_and_b32 v{t+3}, 3, v{t}')
    k(f'v_lshl_add_u32 v{t+3}, v{t+3}, 5, s70')
    k(f'v_cmp_gt_u32 vcc, 16, v{t+1}')
    k(f'v_cndmask_b32 v{t+2}, v{t+3}, v{t+2}, vcc')
    k(f'v_add_u32 v{vd}, v{vd}, v{t+2}')

def wo_dma(k):
    srd(k, 28, 14, 576*1152)
    k(f'v_lshrrev_b32 v5, 3, v{VC}')
    k('v_mul_u32_u24 v5, 18, v5')
    k(f'v_and_b32 v6, 7, v{VC}')
    k('v_add_u32 v5, v5, v6')
    k(f'v_lshrrev_b32 v6, 2, v{VC}')
    k('v_mul_u32_u24 v6, 0x48, v6')
    k(f'v_bfe_u32 v7, v{VC}, 1, 1')
    k('v_mul_u32_u24 v7, 18, v7')
    k(f'v_and_b32 v8, 1, v{VC}')
    k('v_add3_u32 v6, v6, v7, v8')
    k(f's_mul_i32 s62, s{sH}, 36')
    k(f's_mul_i32 s63, s{sH}, 288')
    k(f's_sub_u32 s63, s63, {16*288-16}')
    k(f's_cmp_lt_u32 s{sH}, 16')
    k('s_cselect_b64 vcc, -1, 0')
    k('s_cselect_b32 s62, s62, s63')
    k('s_cselect_b32 s63, 8, 36')
    k('s_mul_i32 s63, s63, 1152')
    k('v_cndmask_b32 v5, v6, v5, vcc')
    k('v_mul_u32_u24 v5, 0x480, v5')
    k(f'v_lshl_add_u32 v5, v{VG}, 4, v5')
    k('s_mul_i32 s62, s62, 1152')
    k('s_lshl_b32 s64, s3, 7')
    k('s_add_u32 s64, s64, s62')
    k('s_add_u32 s65, s64, s63')
    k('s_lshl_b32 s66, s3, 12')
    for n in range(4):
        ks, tp = n & 1, n >> 1
        k(f's_add_u32 m0, s66, {ks*2048+tp*1024-64*ks}')
        k(f'buffer_load_dwordx4 v5, s[28:31], s{64+tp} offen offset:{64*ks} lds')
    k('s_and_b32 s64, s3, 3')
    k('s_lshl_b32 s64, s64, 10')
    k('s_add_u32 m0, s64, 32768')
    k('s_bfe_u32 s64, s3, 0x10001')
    k('s_lshl_b32 s64, s64, 6')
    k('s_add_u32 s62, s62, s64')
    k('s_bitcmp1_b32 s3, 0')
    k('s_cselect_b32 s63, s63, 0')
    k('s_add_u32 s62, s62, s63')
    k('s_add_u32 s62, s62, 1024')
    k('buffer_load_dwordx4 v5, s[28:31], s62 offen lds')

def gwf_job(k):
    RG, A9_, AC9, VA, VB_, VC_ = 16, 48, 96, 112, 116, 120
    D0, D1, D9 = 124, 125, 126
    k(f'v_lshrrev_b32 v5, 2, v{VC}')
    k(f'v_lshl_add_u32 v5, v{VG}, 3, v5')
    k('v_lshlrev_b32 v5, 7, v5')
    k(f'v_and_b32 v6, 3, v{VC}')
    k('v_lshl_add_u32 v5, v6, 3, v5')
    k(f'v_add_u32 v5, {AUX}, v5')
    k(f'v_lshrrev_b32 v6, 3, v{VC}')
    k(f'v_and_b32 v7, 1, v{VG}')
    k('v_lshl_add_u32 v6, v7, 1, v6')
    k('s_lshl_b32 s62, s3, 13')
    k('s_and_b32 s63, s3, 1')
    k('s_lshl_b32 s63, s63, 12')
    k('s_add_u32 s63, s63, 65536')
    for t in range(4):
        k(f'v_xor_b32 v8, {t}, v6')
        k(f'v_lshl_add_u32 v{VA+t}, v8, 5, v5')
        k(f'v_add_u32 v{VB_+t}, s62, v{VA+t}')
        k(f'v_add_u32 v{VC_+t}, s63, v{VA+t}')
    def rd(D, va, off):
        return [f'ds_read_b64_tr_b16 {v(D+4*t+2*z,2)}, v{va+t} offset:{off+z*512}' for t in range(4) for z in range(2)]
    emit(k, rd(A9_, VB_, 0))
    k(f's_mul_i32 s68, s{sH}, 57')
    k('s_lshr_b32 s68, s68, 9')
    k('s_mul_i32 s62, s68, 9')
    k(f's_sub_u32 s62, s{sH}, s62')
    k('s_lshl_b32 s62, s62, 6')
    k(f's_mul_i32 s69, s68, {2*GW_PT}')
    k('s_lshl_b32 s70, s68, 7')
    k(f's_add_u32 s70, s70, {6*GW_PT-256}')
    k('s_cmp_eq_u32 s68, 0')
    k(f's_cselect_b32 s71, {fl(QSCALE)}, 1.0')
    k(f's_mul_i32 s64, s{sCB}, 9216')
    k(f's_add_u32 s64, s64, {GWF}')
    k('s_add_u32 s65, s64, 8192')
    k('s_lshl_b32 s63, s3, 10')
    k('s_add_u32 s64, s64, s63')
    emit(k, rd(A9_+16, VB_, 4096))
    k('v_lshl_add_u32 v5, v7, 4, s62')
    k(f'v_add_u32 v5, v5, v{VC}')
    gw_dest(k, D0, 5, 8)
    k('v_add_u32 v5, 32, v5')
    gw_dest(k, D1, 5, 8)
    emit(k, rd(A9_+32, VC_, 0))
    k(f'v_lshrrev_b32 v6, 1, v{VG}')
    k(f'v_lshl_add_u32 v{D0}, v6, 9, v{D0}')
    k(f'v_lshl_add_u32 v{D1}, v6, 9, v{D1}')
    k('s_lshl_b32 s63, s3, 3')
    k('s_add_u32 s62, s62, s63')
    k(f'v_lshrrev_b32 v6, 3, v{VL}')
    k('v_add_u32 v5, s62, v6')
    gw_dest(k, D9, 5, 8)
    k(f's_mul_i32 s62, s3, {PSTR}')
    k(f's_add_u32 s62, s62, {PART}')
    k(f'v_add_u32 v7, s62, v{V16}')
    def mf(D, b, a, first):
        return f'v_mfma_f32_16x16x32_bf16 {v(D,4)}, {v(b,4)}, {v(a,4)}, {"0" if first else v(D,4)}'
    emit(k, inter([mf(AC9+4*t, B9+4*m, A9_+16*m+4*t, m == 0) for m in range(3) for t in range(4)], rd(RG, VA, 0)))
    for ks in range(18):
        n = ks + 1
        r = rd(RG+16*(n&1), VA, (n & 15)*4096) if n < 18 else []
        if n == 16:
            r = [f'v_add_u32 v{VA+t}, 0x10000, v{VA+t}' for t in range(4)] + r
        if ks == 2:
            r = r + [f'ds_write_b128 v7, {v(AC9+4*t,4)} offset:{t*1024}' for t in range(4)]
        emit(k, r[:4 if n != 16 else 8])
        emit(k, inter([mf(ACC+4*t, B+4*ks, RG+16*(ks&1)+4*t, ks == 0) for t in range(4)], r[4 if n != 16 else 8:]))
    k(f'v_and_b32 v5, 7, v{VL}')
    k(f'v_mul_u32_u24 v10, {PSTR}, v5')
    k('v_lshl_add_u32 v10, v6, 4, v10')
    k('s_lshr_b32 s62, s3, 1')
    k('s_lshl_b32 s62, s62, 10')
    k('s_and_b32 s63, s3, 1')
    k('s_lshl_b32 s63, s63, 7')
    k('s_add_u32 s62, s62, s63')
    k(f's_add_u32 s62, s62, {PART}')
    k('v_add_u32 v10, s62, v10')
    k(f'v_lshl_add_u32 v{D9}, v5, 9, v{D9}')
    k(f'v_mov_b32 v6, {OOR}')
    k('v_cmp_gt_u32 vcc, 2, v5')
    k(f'v_cndmask_b32 v{D9}, v6, v{D9}, vcc')
    k('s_barrier')
    R = 48
    for q in range(4):
        k(f'ds_read_b128 {v(R+4*q,4)}, v10 offset:{q*256}')
    T = 16
    for u in range(2):
        for r in range(8):
            k(f'v_mul_f32 v{ACC+8*u+r}, s71, v{ACC+8*u+r}')
        pack8(k, T+4*u, ACC+8*u)
        k(f'v_permlane16_swap_b32 v{T+4*u}, v{T+4*u+2}')
        k(f'v_permlane16_swap_b32 v{T+4*u+1}, v{T+4*u+3}')
        k(f'buffer_store_dwordx4 {v(T+4*u,4)}, v{D0+u}, {WSR}, s64 offen sc1')
    red8(k, range(R, R+16))
    k(f's_cmp_eq_u32 s{sCB}, 3')
    k('s_cselect_b32 s62, 0, s71')
    k('v_cmp_eq_u32 vcc, 1, v5')
    for r in range(8):
        k(f'v_cndmask_b32 v{R+r}, v{R+r}, v{R+8+r}, vcc')
    k('v_mov_b32 v6, s71')
    k('v_mov_b32 v7, s62')
    k('v_cndmask_b32 v6, v6, v7, vcc')
    for r in range(7):
        k(f'v_mul_f32 v{R+r}, s71, v{R+r}')
    k(f'v_mul_f32 v{R+7}, v6, v{R+7}')
    pack8(k, T+8, R)
    k(f'buffer_store_dwordx4 {v(T+8,4)}, v{D9}, {WSR}, s65 offen sc1')

def wof_job(k):
    core_addr(k)
    for r in range(16):
        k(f'v_mov_b32 v{ACC+r}, 0')
    k(f's_mul_i32 s64, s{sCB}, {W9_CB}')
    k(f's_lshl_b32 s62, s{sH}, 10')
    k('s_add_u32 s64, s64, s62')
    k(f's_add_u32 s64, s64, {WOF}')
    k('s_lshl_b32 s62, s3, 7')
    k('s_add_u32 s65, s64, s62')
    k(f's_add_u32 s65, s65, {8*W9_T}')
    k(f's_mul_i32 s62, s3, {W9_T}')
    k('s_add_u32 s64, s64, s62')
    core_main(k, swapped=True)
    T, R = 16, 24
    k(f'v_and_b32 v5, 7, v{VL}')
    k(f'v_mul_u32_u24 v10, {PSTR}, v5')
    k(f'v_lshrrev_b32 v6, 3, v{VL}')
    k('v_lshlrev_b32 v6, 4, v6')
    k('s_lshl_b32 s62, s3, 7')
    k(f's_add_u32 s62, s62, {PART}')
    k('v_add3_u32 v10, v10, v6, s62')
    k(f'v_mov_b32 v7, {OOR}')
    k('v_cmp_eq_u32 vcc, 0, v5')
    k('v_cndmask_b32 v6, v7, v6, vcc')
    pack8(k, T, ACC)
    k(f'buffer_store_dwordx4 {v(T,4)}, v{V16}, {WSR}, s64 offen sc1')
    k('s_barrier')
    red_read(k, R, 10, 1024)
    red8(k, range(R, R+8))
    pack8(k, T+4, R)
    k(f'buffer_store_dwordx4 {v(T+4,4)}, v6, {WSR}, s65 offen sc1')

def wot_job(k):
    L = k.newlabel('wot')
    k(f's_lshl_b32 s62, s{sH}, 3')
    k('s_add_u32 s62, s62, s3')
    k('s_cmp_ge_u32 s62, 162')
    k(f's_cbranch_scc1 {L}')
    srd(k, 28, 14, 576*1152)
    k('s_mul_i32 s63, s62, 0xe39')
    k('s_lshr_b32 s63, s63, 16')
    k('s_mul_i32 s64, s63, 18')
    k('s_sub_u32 s64, s62, s64')
    k('s_lshl_b32 s62, s62, 10')
    k(f's_mul_i32 s65, s{sCB}, {W9_CB}')
    k('s_add_u32 s62, s62, s65')
    k(f's_add_u32 s62, s62, {WOT}')
    k('s_lshl_b32 s63, s63, 5')
    k(f's_mul_i32 s65, s{sCB}, 288')
    k('s_add_u32 s63, s63, s65')
    k(f'v_lshrrev_b32 v5, 1, v{VG}')
    k('v_mul_u32_u24 v5, 18, v5')
    k(f'v_and_b32 v6, 1, v{VG}')
    k('v_lshl_add_u32 v5, v6, 2, v5')
    k(f'v_mul_u32_u24 v6, 0x48, v{VG}')
    k('s_mul_i32 s65, s64, 36')
    k('s_mul_i32 s66, s64, 288')
    k(f's_sub_u32 s66, s66, {16*288-16}')
    k('s_cmp_lt_u32 s64, 16')
    k('s_cselect_b64 vcc, -1, 0')
    k('s_cselect_b32 s65, s65, s66')
    k('s_cselect_b32 s66, 2, 18')
    k('s_cselect_b32 s68, 8, 36')
    k('s_mul_i32 s66, s66, 1152')
    k('s_mul_i32 s68, s68, 1152')
    k('v_cndmask_b32 v5, v6, v5, vcc')
    k('v_mul_u32_u24 v5, 0x480, v5')
    k(f'v_lshl_add_u32 v5, v{VC}, 1, v5')
    k('s_mul_i32 s65, s65, 1152')
    k('s_add_u32 s64, s65, s63')
    k('s_add_u32 s65, s64, s66')
    k('s_add_u32 s66, s64, s68')
    k('s_add_u32 s68, s65, s68')
    for q, sr in enumerate((64, 65, 66, 68)):
        k(f'buffer_load_ushort v{16+q}, v5, s[28:31], s{sr} offen')
        k(f'buffer_load_ushort v{20+q}, v5, s[28:31], s{sr} offen offset:1152')
    for q in range(4):
        k(f'v_lshl_or_b32 v{16+q}, v{20+q}, 16, v{16+q}')
    k(f'buffer_store_dwordx4 v[16:19], v{V16}, {WSR}, s62 offen sc1')
    k.label(L)
```

```python
import math
XSZ = 0x240000
XB = 0x10000
EPOCH = 0x100
SS = 0x920000
GWF = 0xA00000
GW_PT = 36864
GW_CB = 7 * GW_PT
WOF = 0xC00000
WOT = 0xD00000
W9_T = 18432
W9_CB = 9 * W9_T
LO = 0x1000000
QI = 0x1000000
KV = 0x1500000
OM = 0x1A00000
OL = 0x1C00000
FL = 0x3000000
FLS = 32768
STAMP = 0x3400000
WS_END = 0x3800000
KVT = 2368
KVH = 64 * KVT
GRP = 336
C_AMP = math.sqrt(2.0 / 576.0)
QSCALE = (18 ** -0.5) * math.log2(math.e)
LCG_A, LCG_C = 0x19660D, 0x3C6EF35F

def vpos(d):
    if d == 4: return 18
    if d == 18: return 4
    return d

def kappa_to_c(kap):
    ks, g, e = kap >> 5, (kap >> 3) & 3, kap & 7
    if ks < 16:
        return 18 * (2 * ks + (g >> 1)) + 8 * (e >> 2) + 4 * (g & 1) + (e & 3)
    return 18 * (16 * (ks - 16) + 4 * g + (e >> 1)) + 16 + (e & 1)

def col_to_p(col):
    which, h, d = col // 576, (col % 576) // 18, col % 18
    cb8, hl = h >> 2, h & 3
    if d < 16:
        return cb8, 2 * which + (hl >> 1), 16 * (hl & 1) + d
    return cb8, 6, 8 * which + 2 * hl + d - 16
```

```python
from base import *
from g144 import *

def resid(k):
    k(f's_mul_i32 s62, s{sCB}, {36*512}')
    k(f's_and_b32 s63, s{sRB}, 1')
    k('s_lshl_b32 s63, s63, 8')
    k('s_add_u32 s62, s62, s63')
    k('s_lshl_b32 s63, s3, 11')
    k('s_add_u32 s63, s63, s62')
    k(f's_add_u32 s62, s62, {32*512}')
    k('s_cmp_eq_u32 s3, 0')
    k('s_cselect_b32 s62, s62, 0x100000')
    k(f'v_lshlrev_b32 v5, 4, v{VC}')
    k(f'v_lshl_add_u32 v5, v{VG}, 9, v5')
    k('v_add_u32 v6, s62, v5')
    k('v_add_u32 v5, s63, v5')
    k('ds_read_b128 v[16:19], v5')
    k('ds_read_b128 v[20:23], v6')
    for q in range(8):
        k(f'v_lshlrev_b32 v{ACC+2*q}, 16, v{16+q}')
        k(f'v_and_b32 v{ACC+2*q+1}, s{sHI}, v{16+q}')

def seedT(k, T, vn, vnf, vkb, vt):
    k(f'v_mul_u32_u24 v{vt}, v{vn}, v{vkb}')
    reduce_angle(k, T, vt, vt + 1)
    k(f'v_mul_f32 v{T}, s{sI576}, v{T}')
    for m in range(1, 4):
        k(f'v_fmamk_f32 v{T+2*m}, v{vnf}, {fl(float(m))}, v{T}')
    for m in range(4):
        k(f'v_sin_f32 v{T+2*m+1}, v{T+2*m}')
        k(f'v_cos_f32 v{T+2*m}, v{T+2*m}')
    for m in range(4):
        k(f'v_pk_mul_f32 {v(T+2*m,2)}, {v(T+2*m,2)}, v[20:21]')

def patch17(k, T):
    k(f'v_mul_f32 v22, {fl(1/24/C_AMP)}, v{T+6}')
    k(f'v_cndmask_b32 v{T+6}, v{T+6}, v22, s[64:65]')
    k(f'v_mov_b32 v22, {fl(1/24)}')
    k(f'v_cndmask_b32 v{T+7}, v{T+7}, v22, s[64:65]')

def p9a(k):
    N, NF, KB, TT, D2 = 16, 17, 18, 24, 26
    S0, S1, BF, RG, A9_ = 32, 40, 48, 56, 88
    k(f's_and_b32 s63, s{sRB}, 1')
    k('s_lshl_b32 s63, s63, 8')
    k(f'v_lshl_add_u32 v5, v{VC}, 4, s63')
    k(f'v_lshl_add_u32 v5, v{VG}, 10, v5')
    k('v_add_u32 v6, 0x10000, v5')
    k('s_lshl_b32 s62, s3, 13')
    k('v_add_u32 v7, s62, v5')
    k('s_and_b32 s62, s3, 1')
    k('s_lshl_b32 s62, s62, 12')
    k('v_add_u32 v8, s62, v6')
    def rd(D, va, off):
        return [f'ds_read_b128 {v(D+4*z,4)}, v{va} offset:{off+512*z}' for z in range(2)]
    def sw(a):
        return [f'v_swap_b32 v{a+2}, v{a+4}', f'v_swap_b32 v{a+3}, v{a+5}']
    def rdk(ks):
        return rd(RG + 8*(ks & 3), 5 if ks < 16 else 6, (ks & 15)*4096)
    def mf(D, b, a, first):
        return f'v_mfma_f32_16x16x32_bf16 {v(D,4)}, {v(b,4)}, {v(a,4)}, {"0" if first else v(D,4)}'
    emit(k, rd(A9_, 7, 0) + rd(A9_+8, 7, 4096) + rd(A9_+16, 8, 0))
    for ks in range(3):
        emit(k, rdk(ks))
    k(f'v_mov_b32 v20, {fl(C_AMP)}')
    k(f'v_mov_b32 v21, {fl(-C_AMP)}')
    k(f'v_cmp_eq_u32 s[64:65], 3, v{VG}')
    k(f's_mul_i32 s62, s{sCB}, 144')
    k('s_add_u32 s63, s62, 128')
    k(f'v_add_u32 v{N}, s63, v{VC}')
    k(f'v_cvt_f32_u32 v{NF}, v{N}')
    k(f'v_mul_f32 v{NF}, s{sI576}, v{NF}')
    k('s_lshl_b32 s63, s3, 5')
    k('s_add_u32 s63, s63, 1')
    k(f'v_lshl_add_u32 v{KB}, v{VG}, 2, s63')
    seedT(k, S0, N, NF, KB, TT)
    k(f'v_add_u32 v{KB}, 16, v{KB}')
    seedT(k, S1, N, NF, KB, TT)
    pack8(k, BF, S0)
    pack8(k, BF+4, S1)
    emit(k, sw(A9_) + sw(A9_+8) + sw(A9_+16))
    for m in range(2):
        for tp in range(2):
            k(mf(ACC9+4*tp, BF+4*m, A9_+8*m+4*tp, m == 0))
    L = k.newlabel('n3')
    k('s_cmp_ge_u32 s3, 2')
    k(f's_cbranch_scc1 {L}')
    k('s_lshl_b32 s63, s3, 4')
    k('s_add_u32 s63, s63, 257')
    k(f'v_lshl_add_u32 v{KB}, v{VG}, 2, s63')
    seedT(k, S0, N, NF, KB, TT)
    L2 = k.newlabel('n4')
    k('s_cmp_eq_u32 s3, 0')
    k(f's_cbranch_scc1 {L2}')
    patch17(k, S0)
    k.label(L2)
    pack8(k, BF, S0)
    for tp in range(2):
        k(mf(ACC9+4*tp, BF, A9_+16+4*tp, False))
    k.label(L)
    k('s_lshl_b32 s63, s3, 4')
    k('s_add_u32 s63, s63, s62')
    k(f'v_add_u32 v{N}, s63, v{VC}')
    k(f'v_cvt_f32_u32 v{NF}, v{N}')
    k(f'v_mul_f32 v{NF}, s{sI576}, v{NF}')
    k(f'v_lshlrev_b32 v{TT}, 4, v{N}')
    reduce_angle(k, D2, TT, TT + 1)
    k(f'v_mul_f32 v{D2}, s{sI576}, v{D2}')
    k(f'v_cos_f32 v{D2}, v{D2}')
    k(f'v_lshl_add_u32 v{KB}, v{VG}, 2, 1')
    seedT(k, S0, N, NF, KB, TT)
    k(f'v_add_f32 v{D2}, v{D2}, v{D2}')
    k(f'v_add_u32 v{KB}, 16, v{KB}')
    seedT(k, S1, N, NF, KB, TT)
    for ks in range(18):
        p, c_ = (S0, S1) if ks % 2 == 0 else (S1, S0)
        if ks == 17:
            patch17(k, p)
        bf = BF + 4*(ks & 1)
        pack8(k, bf, p)
        emit(k, sw(RG + 8*(ks & 3)))
        rec = [f'v_pk_fma_f32 {v(p+e,2)}, {v(c_+e,2)}, {v(D2,2)}, {v(p+e,2)} op_sel_hi:[1,0,1] neg_lo:[0,0,1] neg_hi:[0,0,1]' for e in range(0, 8, 2)] if ks < 16 else []
        emit(k, rec[:2])
        k(mf(ACC, bf, RG+8*(ks&3), ks == 0))
        emit(k, rec[2:])
        k(mf(ACC+4, bf, RG+8*(ks&3)+4, ks == 0))
        if ks + 3 < 18:
            emit(k, rdk(ks + 3))

def o_addr(k):
    k(f'v_lshlrev_b32 v16, 4, v{VC}')
    k(f'v_lshl_add_u32 v16, v{VG}, 9, v16')
    k(f'v_and_b32 v17, 3, v{VL}')
    k('v_lshlrev_b32 v17, 13, v17')
    k(f'v_and_b32 v18, 60, v{VL}')
    k('v_add_u32 v17, v17, v18')
    k(f's_lshr_b32 s62, s{sRB}, 1')
    k(f's_and_b32 s63, s{sRB}, 1')
    k('s_lshl_b32 s68, s62, 16')
    k('s_lshl_b32 s69, s63, 8')
    k('s_add_u32 s68, s68, s69')
    k('s_lshl_b32 s70, s3, 12')
    k('s_add_u32 s68, s68, s70')
    k(f's_add_u32 s68, s68, s{sLO}')
    k(f's_add_u32 s68, s68, {OM}')
    k('s_lshl_b32 s69, s62, 8')
    k('s_lshl_b32 s63, s63, 6')
    k('s_add_u32 s69, s69, s63')
    k('s_lshl_b32 s62, s3, 15')
    k('s_add_u32 s69, s69, s62')
    k(f's_add_u32 s69, s69, s{sLO}')
    k(f's_add_u32 s69, s69, {OL}')
    k('s_lshr_b32 s62, s3, 2')
    k('s_lshl_b32 s62, s62, 11')
    k('s_and_b32 s63, s3, 3')
    k('s_lshl_b32 s63, s63, 8')
    k('s_add_u32 s71, s62, s63')

def o_dma(k):
    for tp in range(2):
        k(f's_add_u32 m0, s70, {tp*1024}')
        for ks in range(2):
            k(f'buffer_load_dwordx4 v16, {WSR}, s68 offen offset:{ks*2048} sc1 lds')
        k(f's_add_u32 m0, s71, {32768+tp*1024-tp*128}')
        k(f'buffer_load_dword v17, {WSR}, s69 offen offset:{tp*128} sc1 lds')
        if tp == 0:
            k('s_add_u32 s68, s68, 32768')

def epi_out_addr(k):
    srd(k, 28, 16, 2048*1152)
    k(f'v_mul_u32_u24 v8, 0x9000, v{VC}')
    k(f'v_and_b32 v9, 1, v{VG}')
    k('v_mul_u32_u24 v9, 0x480, v9')
    k(f'v_lshrrev_b32 v10, 1, v{VG}')
    k('v_lshlrev_b32 v10, 4, v10')
    k('v_add3_u32 v8, v8, v9, v10')
    k(f's_mul_i32 s64, s{sCB}, 288')
    k('s_add_u32 s64, s64, s67')
    k(f's_mul_i32 s65, s3, {2*36864}')
    k('s_add_u32 s65, s65, s64')
    k('s_add_u32 s65, s65, 256')
    k('s_lshl_b32 s62, s3, 5')
    k('s_add_u32 s64, s64, s62')

def epi_out(k):
    T, R = 16, 24
    pack8(k, T, ACC)
    k(f'v_permlane16_swap_b32 v{T}, v{T+2}')
    k(f'v_permlane16_swap_b32 v{T+1}, v{T+3}')
    k(f'buffer_store_dwordx4 {v(T,4)}, v8, s[28:31], s64 offen')
    k(f'v_and_b32 v5, 7, v{VL}')
    k(f'v_mul_u32_u24 v10, {PSTR}, v5')
    k(f'v_bfe_u32 v6, v{VL}, 3, 2')
    k('v_lshl_add_u32 v10, v6, 9, v10')
    k(f'v_lshrrev_b32 v7, 5, v{VL}')
    k('v_lshl_add_u32 v10, v7, 4, v10')
    k('s_lshl_b32 s62, s3, 5')
    k(f's_add_u32 s62, s62, {PART}')
    k('v_add_u32 v10, s62, v10')
    k('v_mul_u32_u24 v7, 0x9000, v7')
    k('v_and_b32 v6, 1, v6')
    k('v_lshl_add_u32 v7, v6, 4, v7')
    k('v_add_u32 v7, v7, v9')
    k(f'v_mov_b32 v6, {OOR}')
    k('v_cmp_eq_u32 vcc, 0, v5')
    k('v_cndmask_b32 v7, v6, v7, vcc')
    k('s_barrier')
    red_read(k, R, 10, 256)
    red8(k, range(R, R + 8))
    pack8(k, T + 4, R)
    k(f'buffer_store_dwordx4 {v(T+4,4)}, v7, s[28:31], s65 offen')
```

```python
from base import *
QB, QACC, RG = 100, 64, 16
RLD = 73728

def qkv_pre(k):
    L = k.newlabel('nob')
    k('s_cmp_eq_u32 s3, 7')
    k(f's_cbranch_scc1 {L}')
    k(f's_and_b32 s62, s{sI}, 7')
    k(f's_mul_i32 s62, s62, {GW_CB}')
    k(f's_mul_i32 s63, s3, {GW_PT}')
    k('s_add_u32 s62, s62, s63')
    k(f's_add_u32 s62, s62, {GWF}')
    for ks in range(36):
        k(f'buffer_load_dwordx4 {v(QB+4*ks,4)}, v{V16}, {WSR}, s62 offen offset:{(ks&3)*1024} sc1')
        if ks & 3 == 3 and ks < 35:
            k('s_add_u32 s62, s62, 4096')
    k.label(L)
    k(f'v_and_b32 v10, 31, v{VL}')
    k(f'v_lshrrev_b32 v16, 5, v{VL}')
    k('v_lshlrev_b32 v17, 4, v10')
    k('v_lshl_add_u32 v5, v16, 10, v17')
    k('v_add_u32 v6, 0x10000, v5')
    k('v_lshl_add_u32 v7, v16, 14, v17')
    k(f's_lshr_b32 s62, s{sRB}, 1')
    k('s_lshl_b32 s64, s62, 9')
    k('s_lshl_b32 s63, s3, 15')
    k('s_add_u32 s64, s64, s63')
    k(f's_add_u32 s64, s64, s{sXI}')
    k(f's_add_u32 s64, s64, {XSZ}')
    k(f's_mul_i32 s65, s62, {2*KVT}')
    k(f's_and_b32 s62, s{sI}, 7')
    k(f's_mul_i32 s62, s62, {4*KVH}')
    k('s_add_u32 s65, s65, s62')
    k(f's_add_u32 s65, s65, s{sLO}')
    k(f's_add_u32 s65, s65, {QI}')
    k('s_and_b32 s62, s3, 1')
    k(f's_mul_i32 s62, s62, {2*KVH}')
    k('s_mov_b64 s[68:69], 0')
    LV, L6, LE = k.newlabel('qv'), k.newlabel('q6'), k.newlabel('qe')
    k('s_cmp_ge_u32 s3, 4')
    k(f's_cbranch_scc1 {LV}')
    k('s_add_u32 s65, s65, s62')
    k('s_cmp_ge_u32 s3, 2')
    k(f's_cselect_b32 s62, {KV-QI}, 0')
    k('s_add_u32 s65, s65, s62')
    k(f's_add_u32 s66, s65, {KVH}')
    k(f'v_lshlrev_b32 v9, 2, v10')
    k(f'v_add_u32 v9, {RLD}, v9')
    k(f's_branch {LE}')
    k.label(LV)
    k('s_add_u32 s65, s65, 1024')
    k(f'v_lshlrev_b32 v9, 4, v16')
    k(f'v_add_u32 v9, {RLD}, v9')
    k(f'v_mul_u32_u24 v8, {GRP}, v16')
    k('s_cmp_ge_u32 s3, 6')
    k(f's_cbranch_scc1 {L6}')
    k('s_add_u32 s65, s65, s62')
    k(f's_add_u32 s65, s65, {KV-QI}')
    k('v_lshrrev_b32 v17, 4, v10')
    k(f'v_mul_u32_u24 v17, {KVH}, v17')
    k(f'v_cmp_eq_u32 vcc, 4, v{VC}')
    k(f'v_cndmask_b32 v18, v{VC}, 18, vcc')
    k('v_lshl_add_u32 v8, v18, 4, v8')
    k('v_add_u32 v8, v8, v17')
    k(f's_branch {LE}')
    k.label(L6)
    k('v_cmp_lt_u32 s[68:69], 23, v10')
    k('v_bfe_u32 v17, v10, 1, 2')
    k('v_and_b32 v18, 3, v10')
    k('v_cndmask_b32 v17, v17, v18, s[68:69]')
    k(f'v_mul_u32_u24 v17, {KVH}, v17')
    k('v_and_b32 v18, 1, v10')
    k('v_cmp_gt_u32 vcc, 16, v10')
    k('v_cndmask_b32 v19, 16, 19, vcc')
    k('v_add_u32 v18, v18, v19')
    k('v_cndmask_b32 v18, v18, 4, s[68:69]')
    k('v_lshl_add_u32 v8, v18, 4, v8')
    k('v_add_u32 v8, v8, v17')
    k(f'v_add_u32 v17, {KV-QI}, v8')
    k('v_cmp_gt_u32 vcc, 8, v10')
    k('v_cndmask_b32 v8, v17, v8, vcc')
    k(f'v_mov_b32 v17, {OOR}')
    k('v_cmp_lt_u32 vcc, 27, v10')
    k('v_cndmask_b32 v8, v8, v17, vcc')
    k.label(LE)

def qkv_main(k):
    k('s_lshl_b32 s62, s3, 10')
    for n in range(9):
        if n:
            k(f's_add_u32 m0, s62, {n*8192}')
            k(f's_add_u32 s64, s64, {8*32768}')
        else:
            k('s_mov_b32 m0, s62')
        k(f'buffer_load_dwordx4 v7, {WSR}, s64 offen sc1 lds')
    def rd(ks):
        a = RG + 8*(ks & 3)
        va, o = (5, ks*2048) if ks < 32 else (6, (ks-32)*2048)
        return [f'ds_read_b128 {v(a+4*z,4)}, v{va} offset:{o+512*z}' for z in range(2)]
    def sw(ks):
        a = RG + 8*(ks & 3)
        return [f'v_swap_b32 v{a+2}, v{a+4}', f'v_swap_b32 v{a+3}, v{a+5}']
    def gate(c):
        k(f's_waitcnt vmcnt({6-3*c})')
        k('s_barrier').nobarwait = True
    def loop(kind):
        gate(0)
        if kind == 0:
            stamp(k, 11)
        for ks in range(3):
            emit(k, rd(ks))
        if kind < 2:
            emit(k, sw(0))
        else:
            k('v_mov_b32 v64, 0')
            k('v_mov_b32 v65, 0')
            k(f'v_cmp_lt_u32 vcc, 31, v{VL}')
            k('v_mov_b32 v66, 0xffff')
            k('v_cndmask_b32 v66, -1, v66, vcc')
        for ks in range(36):
            a = RG + 8*(ks & 3)
            if ks + 3 in (12, 24):
                gate((ks + 3) // 12)
            r = rd(ks + 3) if ks + 3 < 36 else []
            if kind < 2:
                def mf(p):
                    x, y = (v(QB+4*ks, 4), v(a+4*p, 4)) if kind == 0 else (v(a+4*p, 4), v(QB+4*ks, 4))
                    return f'v_mfma_f32_32x32x16_bf16 {v(QACC+16*p,16)}, {x}, {y}, {v(QACC+16*p,16) if ks else "0"}'
                emit(k, [mf(0)] + r + [mf(1)] + (sw(ks + 1) if ks < 35 else []))
            else:
                emit(k, r)
                if ks == 35:
                    k(f'v_and_b32 v{a+5}, v66, v{a+5}')
                    k(f'v_and_b32 v{a+7}, v66, v{a+7}')
                for q in (0, 2, 1, 3, 4, 6, 5, 7):
                    k(f'v_dot2c_f32_bf16 v{64+((q>>1)&1)}, v{a+q}, v{a+q}')
    LV, L7, LE = k.newlabel('mv'), k.newlabel('m7'), k.newlabel('me')
    k('s_cmp_ge_u32 s3, 4')
    k(f's_cbranch_scc1 {LV}')
    loop(0)
    k('s_barrier')
    stamp(k, 12)
    k('ds_read_b32 v16, v9')
    k('ds_read_b32 v18, v9 offset:128')
    for p in range(2):
        for hs in range(2):
            a = QACC + 16*p + 8*hs
            T = 20 + 8*p + 4*hs
            for q in range(4):
                k(f'v_pk_mul_f32 {v(a+2*q,2)}, {v(a+2*q,2)}, {v(16+2*p,2)} op_sel_hi:[1,0]')
            for q in range(4):
                k(f'v_cvt_pk_bf16_f32 v{T+q}, v{a+2*q}, v{a+2*q+1}')
            k(f'buffer_store_dwordx4 {v(T,4)}, v{V16}, {WSR}, s{65+hs} offen offset:{p*KVT} sc1')
    k(f's_branch {LE}')
    k.label(LV)
    k('s_cmp_eq_u32 s3, 7')
    k(f's_cbranch_scc1 {L7}')
    loop(1)
    k('s_barrier')
    for p in range(2):
        for i in range(4):
            k(f'ds_read_b128 {v(16+16*p+4*i,4)}, v9 offset:{p*128+i*32}')
    k('v_mov_b32 v10, 0x3f803f80')
    for p in range(2):
        for sub in range(2):
            a = QACC + 16*p + 8*sub
            T = 48 + 8*p + 4*sub
            for q in range(4):
                k(f'v_pk_mul_f32 {v(a+2*q,2)}, {v(a+2*q,2)}, {v(16+16*p+8*sub+2*q,2)}')
            for q in range(4):
                k(f'v_cvt_pk_bf16_f32 v{T+q}, v{a+2*q}, v{a+2*q+1}')
            for q in range(4):
                k(f'v_cndmask_b32 v{T+q}, v{T+q}, v10, s[68:69]')
            k(f'buffer_store_dwordx4 {v(T,4)}, v8, {WSR}, s65 offen offset:{p*KVT+sub*2*GRP} sc1')
    k(f's_branch {LE}')
    k.label(L7)
    loop(2)
    k('v_permlane32_swap_b32 v64, v65')
    k('v_add_f32 v64, v64, v65')
    k(f'v_mov_b32 v65, {fl(1e-5)}')
    k(f'v_fmac_f32 v65, s{sI576}, v64')
    k('v_rsq_f32 v65, v65')
    k(f'v_lshlrev_b32 v64, 2, v{VL}')
    k(f'v_add_u32 v64, {RLD}, v64')
    k('ds_write_b32 v64, v65')
    k('s_barrier')
    k.label(LE)
```

```python
from base import *
from g144 import *
import fftp, helpers, qkv, att, p9

def prologue(k):
    k('s_load_dwordx16 s[4:19], s[0:1], 0')
    k('s_load_dwordx2 s[20:21], s[0:1], 64')
    lab = k.newlabel('go')
    k('s_cmp_lt_u32 s2, 256')
    k(f's_cbranch_scc1 {lab}')
    k('s_endpgm')
    k.label(lab)
    k(f'v_lshrrev_b32 v{VL}, 6, v0')
    k(f'v_and_b32 v{VC}, 15, v0')
    k(f'v_readfirstlane_b32 s3, v{VL}')
    k(f'v_and_b32 v{VL}, 63, v0')
    k(f'v_lshrrev_b32 v{VG}, 4, v{VL}')
    k(f'v_lshlrev_b32 v{V16}, 4, v{VL}')
    k(f's_mov_b32 s{sST}, 0')
    if INSTR:
        k('v_mov_b32 v255, 0')
    stamp(k, 0)
    k(f's_and_b32 s{sX}, s2, 7')
    k(f's_lshr_b32 s{sI}, s2, 3')
    k(f's_lshl_b32 s{sRB}, s{sX}, 3')
    k(f's_lshr_b32 s62, s{sI}, 2')
    k(f's_add_u32 s{sRB}, s{sRB}, s62')
    k(f's_and_b32 s{sCB}, s{sI}, 3')
    k(f's_and_b32 s62, s{sRB}, 3')
    k('s_lshl_b32 s62, s62, 9')
    k(f's_lshr_b32 s63, s{sRB}, 2')
    k('s_lshl_b32 s63, s63, 1')
    k('s_add_u32 s62, s62, s63')
    k('s_mul_i32 s67, s62, 1152')
    k(f'v_mul_u32_u24 v5, 0x9000, v{VC}')
    k(f'v_lshl_add_u32 v5, v{VG}, 4, v5')
    k('s_lshl_b32 s62, s3, 7')
    k('s_add_u32 s62, s62, s67')
    k('s_lshl_b32 s63, s3, 12')
    srd(k, 28, 4, 2048*1152)
    k(f's_load_dword s{sFV}, s[20:21], {EPOCH}')
    for n in range(4):
        ks, tp = n & 1, n >> 1
        k(f's_add_u32 m0, s63, {ks*2048+tp*1024}')
        k(f's_add_u32 s64, s62, {ks*64+tp*1152}')
        k('buffer_load_dwordx4 v5, s[28:31], s64 offen lds')
    k('s_and_b32 s62, s3, 3')
    k('s_lshl_b32 s63, s62, 10')
    k('s_add_u32 m0, s63, 32768')
    k('s_bfe_u32 s63, s3, 0x10001')
    k('s_lshl_b32 s63, s63, 6')
    k('s_and_b32 s62, s3, 1')
    k('s_mul_i32 s62, s62, 1152')
    k('s_add_u32 s62, s62, s63')
    k('s_add_u32 s62, s62, s67')
    k('s_add_u32 s62, s62, 1024')
    k('buffer_load_dwordx4 v5, s[28:31], s62 offen lds')
    srd(k, 24, 20, WS_END)
    k(f's_and_b32 s62, s{sX}, 1')
    k('s_lshl_b32 s62, s62, 1')
    k(f's_sub_u32 s62, s{sI}, s62')
    k('s_sub_u32 s63, s62, 16')
    k('s_cmp_lt_u32 s63, 2')
    k('s_cselect_b32 s62, s62, 0x1000')
    k(f's_cmp_lt_u32 s{sI}, 16')
    k(f's_cselect_b32 s62, s{sI}, s62')
    k(f's_mul_i32 s{sQ}, s{sX}, 18')
    k(f's_add_u32 s{sQ}, s{sQ}, s62')
    k(f's_sub_u32 s62, s{sI}, 20')
    k('s_lshr_b32 s62, s62, 2')
    k('s_lshl_b32 s62, s62, 3')
    k(f's_add_u32 s62, s62, s{sX}')
    k(f's_lshr_b32 s63, s{sX}, 1')
    k('s_add_u32 s63, s63, 24')
    k(f's_cmp_ge_u32 s{sI}, 20')
    k(f's_cselect_b32 s{sH}, s62, s63')
    k(f's_mov_b32 s{sL}, 0')
    k(f's_mov_b32 s{sXI}, {XB}')
    k(f's_mov_b32 s{sLO}, 0')
    k(f's_mov_b32 s{sFL}, {FL}')
    k(f's_mov_b32 s{sSSO}, {SS}')
    k('s_lshr_b32 s62, s2, 2')
    k('s_lshl_b32 s62, s62, 6')
    k('s_and_b32 s63, s2, 3')
    k('s_lshl_b32 s63, s63, 2')
    k(f's_add_u32 s{sSA}, s62, s63')
    k(f's_lshl_b32 s62, s{sH}, 6')
    k(f's_lshl_b32 s63, s{sCB}, 2')
    k(f's_add_u32 s{sSG}, s62, s63')
    k(f's_and_b32 s62, s{sI}, 7')
    k('s_mul_i32 s62, s62, 4608')
    k(f's_lshl_b32 s63, s{sX}, 6')
    k('s_add_u32 s62, s62, s63')
    k(f's_lshr_b32 s63, s{sI}, 3')
    k('s_lshl_b32 s63, s63, 2')
    k(f's_add_u32 s{sS3}, s62, s63')
    k(f's_lshl_b32 s{sPA}, s{sX}, 12')
    k(f's_mul_i32 s{sPG}, s{sX}, 4608')
    k(f's_mov_b32 s{sM576}, 0xc4100000')
    k(f's_mov_b32 s{sI576}, {fl(1/576)}')
    k(f's_mov_b32 s{sHI}, 0xffff0000')
    LH, LJ = k.newlabel('hpre'), k.newlabel('pj')
    k(f's_cmp_ge_u32 s{sQ}, 144')
    k(f's_cbranch_scc1 {LH}')
    srd(k, 32, 6, 2048*578)
    srd(k, 36, 8, 2048*578)
    k(f'v_lshl_add_u32 v6, v{VG}, 8, v{VC}')
    k('v_mul_u32_u24 v6, 0x242, v6')
    k('s_and_b32 s62, s3, 3')
    k('s_lshl_b32 s62, s62, 4')
    k('s_lshr_b32 s63, s3, 2')
    k('s_lshl_b32 s63, s63, 10')
    k('s_add_u32 s62, s62, s63')
    k('s_mul_i32 s62, s62, 578')
    k(f's_lshl_b32 s63, s{sQ}, 2')
    k('s_add_u32 s62, s62, s63')
    k('s_add_u32 s62, s62, 2')
    for r in range(4):
        k(f'buffer_load_dword v{WV+r}, v6, s[32:35], s62 offen')
        k(f'buffer_load_dword v{WV+4+r}, v6, s[36:39], s62 offen')
        if r < 3:
            k(f's_add_u32 s62, s62, {64*578}')
    k(f'buffer_load_dword v12, v6, s[36:39], s62 offen')
    k(f's_branch {LJ}')
    k.label(LH)
    srd(k, 32, 12, 576*3456)
    k(f'v_lshrrev_b32 v6, 3, v{VL}')
    k('v_mul_u32_u24 v7, 0xd80, v6')
    k('v_and_b32 v6, 2, v6')
    k(f'v_and_b32 v8, 7, v{VL}')
    k('v_xor_b32 v6, v6, v8')
    k('s_and_b32 s62, s3, 1')
    k('s_lshl_b32 s62, s62, 2')
    k('v_xor_b32 v6, s62, v6')
    k('v_lshl_add_u32 v6, v6, 4, v7')
    k(f's_lshl_b32 s62, s{sH}, 7')
    k(f's_min_u32 s62, s62, {26*128}')
    k(f's_mul_i32 s63, s3, {8*3456}')
    k('s_add_u32 s62, s62, s63')
    k('s_lshl_b32 s63, s3, 10')
    for n in range(9):
        k(f's_add_u32 m0, s63, {AUX + n*8192}')
        k('buffer_load_dwordx4 v6, s[32:35], s62 offen lds')
        if n < 8:
            k(f's_add_u32 s62, s62, {64*3456}')
    k.label(LJ)
    fgen(k)
    for r in range(16):
        k(f'v_mov_b32 v{ACC+r}, 0')
    k(f's_mul_i32 s{sFV}, s{sFV}, {LCG_A}')
    k(f's_add_u32 s{sFV}, s{sFV}, {LCG_C}')
    core_addr(k)
    epi_x_addr(k)
    stamp(k, 1)
    k('s_waitcnt vmcnt(9)')

def wexch(k):
    L = k.newlabel('wx')
    k(f's_cmp_ge_u32 s{sQ}, 144')
    k(f's_cbranch_scc1 {L}')
    k(f's_cmp_lg_u32 s{sL}, 0')
    k(f's_cbranch_scc1 {L}')
    k('s_mov_b32 s62, 0x05040100')
    k('s_mov_b32 s63, 0x07060302')
    for r in range(4):
        k(f'v_perm_b32 v{40+r}, v{WV+4+r}, v{WV+r}, s62')
        k(f'v_perm_b32 v{44+r}, v{WV+4+r}, v{WV+r}, s63')
    k('s_and_b32 s62, s3, 3')
    k('s_lshl_b32 s62, s62, 11')
    k('s_lshr_b32 s63, s3, 2')
    k('s_lshl_b32 s63, s63, 10')
    k('s_add_u32 s62, s62, s63')
    k(f's_add_u32 s62, s62, {AUX}')
    k(f'v_add_u32 v23, s62, v{V16}')
    k('ds_write_b128 v23, v[40:43]')
    k('ds_write_b128 v23, v[44:47] offset:8192')
    k.label(L)

def build():
    k = Kern('f_kernel')
    prologue(k)
    CORE = k.newlabel('core')
    k.label(CORE)
    k('s_barrier')
    stamp(k, 2)
    core_main(k)
    stamp(k, 3)
    FIN = k.newlabel('fin')
    if STOP > 4:
        k(f's_cmp_eq_u32 s{sL}, 2')
        k(f's_cbranch_scc1 {FIN}')
    epi_x(k, wexch)
    signal(k, 0, sSA, 8)
    stamp(k, 4)
    if STOP == 1:
        finish(k)
        return k
    LH, LJ, L1, L2, L3, L4 = [k.newlabel(x) for x in ('hlp', 'jn', 'h1', 'h2', 'h3', 'h4')]
    k(f's_cmp_ge_u32 s{sQ}, 144')
    k(f's_cbranch_scc1 {LH}')
    fftp.fft_consts(k)
    wait(k, 0, sPA, 64)
    stamp(k, 5)
    fftp.fft_main(k)
    k(f's_branch {LJ}')
    k.label(LH)
    k(f's_cmp_lg_u32 s{sL}, 0')
    k(f's_cbranch_scc1 {L3}')
    k(f's_cmp_ge_u32 s{sH}, 18')
    k(f's_cbranch_scc1 {L1}')
    helpers.wo_dma(k)
    k.label(L1)
    k(f's_cmp_ge_u32 s{sH}, 27')
    k(f's_cbranch_scc1 {LJ}')
    helpers.gwf_job(k)
    stamp(k, 5)
    signal(k, 1, sSG, 8)
    stamp(k, 6)
    k(f's_cmp_ge_u32 s{sH}, 18')
    k(f's_cbranch_scc1 {LJ}')
    helpers.wof_job(k)
    stamp(k, 7)
    k(f's_branch {LJ}')
    k.label(L3)
    helpers.wot_job(k)
    k.label(LJ)
    stamp(k, 8)
    signal(k, 2, sSA, 8)
    stamp(k, 9)
    if STOP == 2:
        finish(k)
        return k
    k(f's_cmp_lg_u32 s{sL}, 0')
    k(f's_cbranch_scc1 {L4}')
    wait(k, 1, sPA, 27)
    k.label(L4)
    qkv.qkv_pre(k)
    wait(k, 2, sPA, 64)
    stamp(k, 10)
    qkv.qkv_main(k)
    stamp(k, 13)
    signal(k, 3, sS3, 1)
    stamp(k, 14)
    if STOP == 3:
        finish(k)
        return k
    L5, L6, L7, L8 = [k.newlabel(x) for x in ('p9', 'p9j', 'eo', 'eoj')]
    k(f's_cmp_lg_u32 s{sL}, 0')
    k(f's_cbranch_scc1 {L5}')
    p9.resid(k)
    k(f's_branch {L6}')
    k.label(L5)
    p9.p9a(k)
    k.label(L6)
    att.att_pre(k)
    stamp(k, 15)
    wait(k, 3, sPG, 8)
    stamp(k, 16)
    att.att_main(k)
    stamp(k, 20)
    signal(k, 4, sS3, 1)
    stamp(k, 21)
    if STOP == 4:
        finish(k)
        return k
    p9.o_addr(k)
    k(f's_add_u32 s{sL}, s{sL}, 1')
    k(f's_add_u32 s{sXI}, s{sXI}, {2*XSZ}')
    k(f's_add_u32 s{sSSO}, s{sSSO}, 0x8000')
    k(f's_add_u32 s{sLO}, s{sLO}, {LO}')
    core_addr(k)
    k(f's_cmp_eq_u32 s{sL}, 2')
    k(f's_cbranch_scc1 {L7}')
    epi_x_addr(k)
    k(f's_branch {L8}')
    k.label(L7)
    p9.epi_out_addr(k)
    k.label(L8)
    wait(k, 4, sPG, 8)
    p9.o_dma(k)
    stamp(k, 22)
    k(f's_add_u32 s{sFL}, s{sFL}, {5*FLS}')
    k(f's_add_u32 s{sST}, s{sST}, 21')
    k('s_waitcnt vmcnt(0)')
    k(f's_branch {CORE}')
    k.label(FIN)
    p9.epi_out(k)
    LE = k.newlabel('end')
    k('s_or_b32 s62, s2, s3')
    k('s_cmp_lg_u32 s62, 0')
    k(f's_cbranch_scc1 {LE}')
    k(f'v_mov_b32 v5, s{sFV}')
    k('v_mov_b32 v6, 0')
    k('s_mov_b64 exec, 1')
    k(f'buffer_store_dword v5, v6, {WSR}, 0 offen offset:{EPOCH}')
    k.label(LE)
    stamp(k, 4)
    finish(k)
    return k

if __name__ == '__main__':
    out = sys.argv[1] if len(sys.argv) > 1 else 'f.s'
    k = build()
    k.maxv = 256
    emit_file(out, [k], [('f_kernel', 256, 512, LDS)])
```
